```python
import torch

def _softmax(x, axis=-1):
    return torch.softmax(x, dim=axis)
def _gelu(x):
    return torch.nn.functional.gelu(x, approximate="tanh")
def _silu(x):
    return torch.nn.functional.silu(x)
def _sigmoid(x):
    return torch.sigmoid(x)
def _layernorm(x, axis=-1, eps=1e-5):
    m = x.mean(dim=axis, keepdim=True)
    v = x.var(dim=axis, keepdim=True, unbiased=False)
    return (x - m) / torch.sqrt(v + eps)
def _scatter_add(tgt, idx, src, axis=0):
    return tgt.clone().index_add_(axis, idx, src)
def _segment_sum(src, seg, n):
    out = torch.zeros((n,) + src.shape[1:], dtype=src.dtype)
    return out.index_add_(0, seg, src)
def _pad(x, pw):
    flat = tuple(v for pair in reversed(pw) for v in pair)
    return torch.nn.functional.pad(x, flat)

kernel_name = 'sequential_preLN__gqa_block_cached__glu_gated_reglu__decode'

def setup_inputs():

    _w = (lambda a: (lambda t: t.to(torch.bfloat16) if t.is_floating_point() else t)(torch.as_tensor(a)))
    def _A_setup():
        B, Sq, D = 1, 1, 512
        Hq, Hkv, Sk, Dh = 32, 8, 65536, 128
        assert Hq % Hkv == 0, (Hq, Hkv)
        return {
            "x": _w((lambda *s: torch.randn(*s, dtype=torch.bfloat16) * 0.05)(B, Sq, D)),
            "k_cache": _w((lambda *s: torch.randn(*s, dtype=torch.bfloat16) * 3.2)(B, Hkv, Sk, Dh)),
            "v_cache": _w((lambda *s: torch.randn(*s, dtype=torch.bfloat16) * 1.6)(B, Hkv, Sk, Dh)),
            "wq": _w((lambda *s: torch.randn(*s, dtype=torch.bfloat16) * 3.2)(D, Hq * Dh) * (D ** -0.5)),
            "wo": _w((lambda *s: torch.randn(*s, dtype=torch.bfloat16) * 1.6)(Hq * Dh, D) * ((Hq * Dh) ** -0.5)),
        }
    _A_in = _A_setup()

    def _B_setup():
        B, S, D, F = 1, 1, 512, 1792
        return {
            "x": _w((lambda *s: torch.randn(*s, dtype=torch.bfloat16) * 0.05)(B, S, D)),
            "W_gate": _w((lambda *s: torch.randn(*s, dtype=torch.bfloat16) * 1.6)(D, F) * (2.0 / D) ** 0.5),
            "W_up": _w((lambda *s: torch.randn(*s, dtype=torch.bfloat16) * 1.6)(D, F) * (2.0 / D) ** 0.5),
            "W_down": _w((lambda *s: torch.randn(*s, dtype=torch.bfloat16) * 1.6)(F, D) * (1.0 / F) ** 0.5),
        }
    _B_in = _B_setup()

    return {
        "A_x": _A_in["x"],
        "A_k_cache": _A_in["k_cache"],
        "A_v_cache": _A_in["v_cache"],
        "A_wq": _A_in["wq"],
        "A_wo": _A_in["wo"],
        "B_x": _B_in["x"],
        "B_W_gate": _B_in["W_gate"],
        "B_W_up": _B_in["W_up"],
        "B_W_down": _B_in["W_down"],
    }

def reference(A_x, A_k_cache, A_v_cache, A_wq, A_wo, B_x, B_W_gate, B_W_up, B_W_down):
    def _A_ref(x, k_cache, v_cache, wq, wo):
        B, Sq, D = x.shape
        Hq, Dh = 32, 128
        Hkv = k_cache.shape[1]
        rep = Hq // Hkv
        q = (lambda x, *d: x.permute(*d))((x @ wq).reshape(B, Sq, Hq, Dh), 0, 2, 1, 3)
        k = (lambda x, n, axis: torch.repeat_interleave(x, n, dim=axis))(k_cache, rep, axis=1)
        v = (lambda x, n, axis: torch.repeat_interleave(x, n, dim=axis))(v_cache, rep, axis=1)
        scores = torch.einsum("bhqd,bhkd->bhqk", q, k) * (Dh ** -0.5)
        p = _softmax(scores, axis=-1)
        o = torch.einsum("bhqk,bhkd->bhqd", p, v)
        return (lambda x, *d: x.permute(*d))(o, 0, 2, 1, 3).reshape(B, Sq, Hq * Dh) @ wo

    def _B_ref(x, W_gate, W_up, W_down):
        gate = torch.einsum("bsd,df->bsf", x, W_gate)
        up = torch.einsum("bsd,df->bsf", x, W_up)
        gate = gate * (lambda x, dt: x.to(dt))(gate > 0, gate.dtype)
        h = gate * up
        return torch.einsum("bsf,fd->bsd", h, W_down)

    x = A_x
    h = x + _A_ref(_layernorm(x, axis=-1), A_k_cache, A_v_cache, A_wq, A_wo)
    h2 = h + _B_ref(_layernorm(h, axis=-1), B_W_gate, B_W_up, B_W_down)
    return h2
```

```python
import re

TRANS = ("v_exp_f32", "v_log_f32", "v_rcp_f32", "v_rsq_f32", "v_sqrt_f32", "v_sin_f32", "v_cos_f32")


def regs_of(tok):
    tok = tok.strip()
    if tok.startswith("-") or tok.startswith("|"):
        tok = tok.strip("-|")
    m = re.fullmatch(r"([vas])(\d+)", tok)
    if m:
        return [(m.group(1), int(m.group(2)))]
    m = re.fullmatch(r"([vas])\[(\d+):(\d+)\]", tok)
    if m:
        return [(m.group(1), i) for i in range(int(m.group(2)), int(m.group(3)) + 1)]
    if tok == "vcc":
        return [("s", 106), ("s", 107)]
    if tok == "vcc_lo":
        return [("s", 106)]
    if tok == "vcc_hi":
        return [("s", 107)]
    if tok == "exec":
        return [("s", 126), ("s", 127)]
    return []


class Ins:
    def __init__(self, text):
        self.text = text
        t = text.split(";")[0].strip()
        self.label = t.endswith(":")
        self.directive = t.startswith(".") or t == ""
        self.op = ""
        self.dst = []
        self.src = []
        self.cls = "other"
        self.states = 0
        self.dpp = False
        self.srcC = []
        self.srcAB = []
        self.dppsrc = []
        self.wide_store = []
        if self.label or self.directive:
            return
        parts = t.split(None, 1)
        op = parts[0]
        self.op = op
        rest = parts[1] if len(parts) > 1 else ""
        ops = [o.strip() for o in re.split(r",(?![^\[]*\])", rest)] if rest else []
        mods = []
        if ops:
            last = ops[-1].split()
            ops[-1] = last[0] if last else ""
            mods = last[1:]
        self.mods = mods
        self.states = 1
        if op == "s_nop":
            self.states = int(ops[0], 0) + 1
            self.cls = "salu"
            return
        R = [regs_of(o) for o in ops]
        if op.startswith("v_mfma"):
            self.cls = "mfma"
            self.dst = R[0]
            self.srcAB = R[1] + R[2]
            self.srcC = R[3]
            self.src = self.srcAB + self.srcC
        elif op.startswith("v_"):
            self.cls = "valu"
            if op.startswith("v_permlane"):
                self.dst = R[0] + R[1]
                self.src = R[0] + R[1]
            elif op.startswith("v_cmp"):
                self.dst = R[0]
                self.src = sum(R[1:], [])
            else:
                self.dst = R[0]
                self.src = sum(R[1:], [])
                if op.startswith("v_fmac") or op.startswith("v_dot2c") or op.startswith("v_writelane"):
                    self.src = self.src + R[0]
                if op.startswith("v_dot2_"):
                    self.srcC = R[3]
                    self.srcAB = R[1] + R[2]
                if op.startswith("v_cndmask") and len(ops) == 3:
                    self.src = self.src + regs_of("vcc")
            if "_dpp" in op or any(m.startswith(("row_", "quad_perm", "wave_")) for m in mods):
                self.dpp = True
                self.dppsrc = R[1]
        elif op.startswith("buffer_") or op.startswith("global_"):
            self.cls = "vmem"
            if "load" in op:
                self.dst = R[0]
                self.src = sum(R[1:], [])
            else:
                self.src = sum(R, [])
                if "x4" in op or "x3" in op:
                    self.wide_store = R[0]
        elif op.startswith("ds_"):
            self.cls = "ds"
            if "read" in op or "rtn" in op or "permute" in op:
                self.dst = R[0]
                self.src = sum(R[1:], [])
            else:
                self.src = sum(R, [])
        elif op.startswith("s_"):
            self.cls = "salu"
            if op.startswith(("s_cmp", "s_cbranch", "s_branch", "s_waitcnt", "s_barrier", "s_endpgm", "s_sleep", "s_setprio", "s_bitcmp")):
                self.src = sum(R, [])
            else:
                self.dst = R[0] if R else []
                self.src = sum(R[1:], [])
        else:
            raise ValueError("unknown op " + text)


def need(p, c):
    n = 0
    pd = set(p.dst)
    cs = set(c.src)
    cd = set(c.dst)
    if p.cls == "valu":
        pv = {r for r in pd if r[0] in "va"}
        ps = {r for r in pd if r[0] == "s"}
        isdot = p.op.startswith("v_dot")
        if isdot:
            if pv & (cs | cd):
                if c.op == p.op and not (pv & set(c.srcAB)) and (pv & set(c.srcC)):
                    pass
                else:
                    n = max(n, 3)
        if c.cls == "mfma" and pv & cs:
            n = max(n, 2)
        if c.cls == "valu":
            if c.dpp and pv & set(c.dppsrc):
                n = max(n, 2)
            if c.op.startswith("v_permlane") and pv & cs:
                n = max(n, 2)
            if c.op.startswith(("v_readlane", "v_readfirstlane")) and pv & cs:
                n = max(n, 1)
            if ps & cs:
                n = max(n, 4 if c.op.startswith(("v_readlane", "v_writelane")) else 2)
        if c.cls in ("vmem", "ds") and ps & cs:
            n = max(n, 5)
        if c.cls == "salu" and ps & cs:
            n = max(n, 1)
        if p.op.startswith(TRANS) and pv & cs:
            n = max(n, 1)
        if p.op.startswith("v_permlane") and pv & cs:
            n = max(n, 1)
    elif p.cls == "mfma":
        if c.cls == "mfma":
            if pd & set(c.srcAB):
                n = max(n, 8)
            if pd & set(c.srcC) and c.srcC != p.dst:
                n = max(n, 6)
            if pd & cd and c.srcC != p.dst:
                n = max(n, 6)
        elif pd & (cs | cd):
            n = max(n, 8)
        if c.cls == "valu" and set(p.srcC) & cd:
            n = max(n, 3)
    elif p.cls == "vmem":
        if p.wide_store and set(p.wide_store) & cd:
            n = max(n, 2)
    return n


def _req(hist, ins):
    req = 0
    dist = 0
    for p in reversed(hist):
        r = need(p, ins) - dist
        if r > req:
            req = r
        dist += p.states
        if dist >= 12:
            break
    return req


def _trim(h):
    dist = 0
    k = len(h)
    while k > 0 and dist < 12:
        k -= 1
        dist += h[k].states
    return h[k:]


def pad(lines):
    out = []
    hists = [[]]
    fwd = {}
    labelpos = {}
    nins = 0
    for text in lines:
        ins = Ins(text)
        if ins.directive:
            out.append(ins)
            continue
        if ins.label:
            name = text.split(";")[0].strip()[:-1]
            labelpos[name] = len(out)
            out.append(ins)
            hists = hists + fwd.pop(name, [])
            continue
        req = max([_req(h, ins) for h in hists] + [0])
        isbr = ins.op.startswith(("s_cbranch", "s_branch"))
        if isbr:
            tgt = text.split(";")[0].split()[-1]
            if tgt in labelpos:
                for h in hists:
                    hh = list(h) + [ins]
                    base = len(hh)
                    d = 0
                    for nx in out[labelpos[tgt]:]:
                        if nx.label or nx.directive:
                            continue
                        dist = d
                        for p in reversed(hh[:base]):
                            r = need(p, nx) - dist
                            if r > req:
                                req = r
                            dist += p.states
                            if dist >= 12:
                                break
                        d += nx.states
                        if d >= 12:
                            break
        if req > 0:
            nop = Ins("  s_nop %d" % (req - 1))
            out.append(nop)
            for h in hists:
                h.append(nop)
            nins += 1
        out.append(ins)
        for h in hists:
            h.append(ins)
        hists = [_trim(h) for h in hists]
        uniq = []
        for h in hists:
            if not any(len(h) == len(u) and all(a is b for a, b in zip(h, u)) for u in uniq):
                uniq.append(h)
        hists = uniq
        if isbr:
            tgt = text.split(";")[0].split()[-1]
            if tgt not in labelpos:
                fwd.setdefault(tgt, []).extend([list(h) for h in hists])
            if ins.op == "s_branch":
                hists = [[]]
        if ins.op == "s_endpgm":
            hists = [[]]
    return [i.text for i in out], nins
```

```python
import sys, os
sys.path.insert(0, os.path.dirname(os.path.abspath(__file__)))
import asmlib

NAME = "sequential_preLN__gqa_block_cached__glu_gated_reglu__decode_kernel"

WS_QB = 0x1000
WS_FL = 0x6000
WS_ST = 0x8000
WS_O1 = 0x10000
WS_A2 = 0x100000
WS_A3 = 0x110000
WS_STAMP = 0x200000
WS_SIZE = 0x300000
L_QP = 0
L_CNT = 256
L_STW = 512
L_OP = 1024
L_S2 = 10240
L_LNS = 10752
L_H = 11264
L_HN = 12288
L_GU = 13312
L_F = 13824
LDS_BYTES = 16384
sG, sJ, sE, sTAG = 28, 29, 30, 31
sK, sV, sWS, sX, sWQ, sWO, sWG, sWU, sWD, sOUT = 32, 36, 40, 44, 48, 52, 56, 60, 64, 68
sBASE, sT, sLO, sHI = 72, 73, 74, 75
sT16, sT2, sSPIN, sT1, sP = 76, 77, 78, 79, 80
sU0, sU1, sU2 = 81, 82, 83
sM = 84
sMISS = 86
vL, vT0, vV, vK = 0, 1, 2, 3
vX3, vM, vLs, vST = 4, 5, 6, 7
vQ = 8
vA, vB, vC, vD = 12, 13, 14, 15
vZ = 16
vACC = 48
vAT = 80
vRD = 96
vBS = 112
vE = 120
vRING = 128
LOG2E = 0x3fb8aa3b
SPIN_LIMIT = 200000


def srd(i):
    return f"s[{i}:{i+3}]"


def vr(i, n=1, k="v"):
    return f"{k}{i}" if n == 1 else f"{k}[{i}:{i+n-1}]"


class Gen:
    def __init__(self, W=16, holdq=72, pq=56, holds=72, ps=56, slope=3, stamps=False, R=96):
        self.W, self.holdq, self.pq, self.holds, self.ps, self.slope = W, holdq, pq, holds, ps, slope
        self.stamps = stamps
        self.R = R
        self.L = []
        self.nload = 0
        self.done = 0
        self.nlab = 0
        self.nstamp = 0
        self.stamp_names = []

    def A(self, s):
        self.L.append("  " + s if not s.endswith(":") else s)

    def lab(self, p="L"):
        self.nlab += 1
        return f"{p}_{self.nlab}"

    def load(self, text):
        self.A(text)
        self.nload += 1
        return self.nload

    def wait(self, lid):
        if lid <= self.done:
            return
        n = self.nload - lid
        self.A(f"s_waitcnt vmcnt({min(n, 63)})")
        self.done = lid if n <= 63 else self.nload - 63

    def waitall(self):
        self.A("s_waitcnt vmcnt(0)")
        self.done = self.nload

    def stamp(self, name):
        if not self.stamps:
            return
        A = self.A
        A("s_memrealtime vcc")
        A("s_waitcnt lgkmcnt(0)")
        A(f"v_writelane_b32 v{vST}, vcc_lo, {self.nstamp}")
        self.stamp_names.append(name)
        self.nstamp += 1

    def dpp(self, op, d, s0, s1, ctrl, bank=0xf, row=0xf):
        self.A(f"{op}_dpp v{d}, v{s0}, v{s1} {ctrl} row_mask:{row:#x} bank_mask:{bank:#x}")

    def wave_sum_to_sgpr(self, regs, sdst):
        for c in ("row_ror:8", "row_ror:4", "row_ror:2", "row_ror:1"):
            for r in regs:
                self.dpp("v_add_f32", r, r, r, c)
        for r in regs:
            self.dpp("v_add_f32", r, r, r, "row_bcast:15", row=0xa)
        for r in regs:
            self.dpp("v_add_f32", r, r, r, "row_bcast:31", row=0xc)
        for r, s in zip(regs, sdst):
            self.A(f"v_readlane_b32 s{s}, v{r}, 63")

    def allreduce_25(self, op, x, t):
        self.dpp(op, x, x, x, "row_ror:4")
        self.dpp(op, x, x, x, "row_ror:8")
        for sw in ("v_permlane16_swap_b32", "v_permlane32_swap_b32"):
            self.A(f"v_mov_b32 v{t}, v{x}")
            self.A(f"{sw} v{x}, v{t}")
            self.A(f"{op} v{x}, v{x}, v{t}")

    def tswap(self, which, pairs):
        sw = "v_permlane32_swap_b32" if which == 32 else "v_permlane16_swap_b32"
        for x, y in pairs:
            self.A(f"{sw} v{x}, v{y}")
        for x, y in pairs:
            self.A(f"v_add_f32 v{x}, v{x}, v{y}")

    def rnd(self, d, s):
        self.A(f"v_cvt_pk_bf16_f32 v{d}, 0, v{s}")

    def ln_scalars(self, vmean, vvar, vmb, vrs):
        A = self.A
        self.rnd(vmb, vmean)
        self.rnd(vrs, vvar)
        A(f"v_add_f32 v{vrs}, 0x3727c5ac, v{vrs}")
        self.rnd(vrs, vrs)
        A(f"v_sqrt_f32 v{vrs}, v{vrs}")
        self.rnd(vrs, vrs)
        A(f"v_rcp_f32 v{vrs}, v{vrs}")

    def norm_pair(self, d, lo, hi, vmb, vrs):
        A = self.A
        A(f"v_sub_f32 v{lo}, v{lo}, v{vmb}")
        A(f"v_sub_f32 v{hi}, v{hi}, v{vmb}")
        self.rnd(lo, lo)
        self.rnd(hi, hi)
        A(f"v_mul_f32 v{lo}, v{lo}, v{vrs}")
        A(f"v_mul_f32 v{hi}, v{hi}, v{vrs}")
        A(f"v_cvt_pk_bf16_f32 v{d}, v{lo}, v{hi}")

    def perm_pairs(self, dst, r0, r1):
        for u in range(4):
            self.A(f"v_perm_b32 v{dst+2*u}, v{r1+u}, v{r0+u}, s{sLO}")
            self.A(f"v_perm_b32 v{dst+2*u+1}, v{r1+u}, v{r0+u}, s{sHI}")

    def poll_issue(self, loads):
        ids = []
        for t in loads:
            ids.append(self.load(t))
        return ids

    def poll_finish(self, loads, check, counted_id=None):
        A = self.A
        n = len(loads)
        if counted_id is None:
            self.waitall()
        else:
            self.wait(counted_id)
        ldone, lretry = self.lab("Lpd"), self.lab("Lpr")

        def orall():
            if n == 1:
                A(f"s_mov_b64 s[{sM}:{sM+1}], s[{sMISS}:{sMISS+1}]")
            else:
                A(f"s_or_b64 s[{sM}:{sM+1}], s[{sMISS}:{sMISS+1}], s[{sMISS+2}:{sMISS+3}]")
                for k in range(2, n):
                    A(f"s_or_b64 s[{sM}:{sM+1}], s[{sM}:{sM+1}], s[{sMISS+2*k}:{sMISS+2*k+1}]")
            A(f"s_cmp_eq_u64 s[{sM}:{sM+1}], 0")
        for k in range(n):
            check(k)
        orall()
        A(f"s_cbranch_scc1 {ldone}")
        A(f"s_mov_b32 s{sSPIN}, {SPIN_LIMIT}")
        A(f"{lretry}:")
        for k in range(n):
            sk = self.lab("Lps")
            A(f"s_cmp_eq_u64 s[{sMISS+2*k}:{sMISS+2*k+1}], 0")
            A(f"s_cbranch_scc1 {sk}")
            A(f"s_mov_b64 exec, s[{sMISS+2*k}:{sMISS+2*k+1}]")
            for t in (loads[k] if isinstance(loads[k], (list, tuple)) else [loads[k]]):
                A(t)
            A(f"{sk}:")
        A("s_mov_b64 exec, -1")
        A("s_waitcnt vmcnt(0)")
        for k in range(n):
            sk = self.lab("Lpc")
            A(f"s_cmp_eq_u64 s[{sMISS+2*k}:{sMISS+2*k+1}], 0")
            A(f"s_cbranch_scc1 {sk}")
            check(k)
            A(f"{sk}:")
        orall()
        A(f"s_cbranch_scc1 {ldone}")
        A(f"s_sub_u32 s{sSPIN}, s{sSPIN}, 1")
        A(f"s_cmp_lg_u32 s{sSPIN}, 0")
        A(f"s_cbranch_scc1 {lretry}")
        A(f"{ldone}:")

    def check_sentinel(self, base):
        def chk(k):
            r = base + 4 * k
            t = vE + (k & 1)
            self.A(f"v_max3_u32 v{t}, v{r}, v{r+1}, v{r+2}")
            self.A(f"v_max_u32 v{t}, v{t}, v{r+3}")
            self.A(f"v_cmp_eq_u32 s[{sMISS+2*k}:{sMISS+2*k+1}], -1, v{t}")
        return chk

    def slot(self, i):
        s = i % self.R
        if s < 32:
            return ("a", s * 4)
        if s < 64:
            return ("v", vRING + (s - 32) * 4)
        return ("a", 128 + (s - 64) * 4)

    def issue_stream(self, i):
        t, r = self.slot(i)
        isK = i < 128
        a = i % 128
        off = (a >> 4) * (32 * 65536) + (a & 15) * 4096
        self.A(f"s_add_u32 s{sT}, s{sBASE}, {off}")
        return self.load(f"buffer_load_dwordx4 {vr(r,4,t)}, v{vK if isK else vV}, {srd(sK if isK else sV)}, s{sT} offen nt")

    def k_dpp(self, a):
        d = vAT + (a & 3) * 4
        z = vZ + 8 * (a >> 5) + (a & 7)
        t = (a >> 3) & 3
        first = True
        for dp in (1, 2, 3):
            p = (t + dp) & 3
            ror = (4 * (t - p)) % 16
            self.dpp("v_add_f32", z, d + p, (d + t) if first else z, f"row_ror:{ror}", bank=1 << t)
            first = False
        if (a & 31) == 31:
            G = a >> 5
            zs = [vZ + 8 * G + i for i in range(8)]
            for z in zs:
                self.rnd(z, z)
            for z in zs:
                self.A(f"v_mul_f32 v{z}, 0x3db504f3, v{z}")
            for z in zs:
                self.rnd(z, z)
            if G == 0:
                self.A(f"v_max_f32 v{vM}, v{zs[0]}, v{zs[1]}")
                rest = zs[2:]
            else:
                rest = zs
            for i in range(0, len(rest), 2):
                self.A(f"v_max3_f32 v{vM}, v{vM}, v{rest[i]}, v{rest[i+1]}")

    def consume_k(self, a):
        t, r = self.slot(a)
        d = vAT + (a & 3) * 4
        self.A(f"v_mfma_f32_16x16x32_bf16 {vr(d,4)}, {vr(r,4,t)}, {vr(vQ,4)}, 0")
        if a >= 3:
            self.k_dpp(a - 3)
        if a == 127:
            for b in (125, 126, 127):
                self.k_dpp(b)

    def consume_v_group(self, gam):
        A = self.A
        G, t0 = gam >> 2, gam & 3
        pb = vZ + 8 * G
        if t0 == 0:
            B = pb
        else:
            B = vBS + (gam & 1) * 4
            for u in range(4):
                A(f"v_mov_b32_dpp v{B+u}, v{pb+u} row_ror:{16-4*t0} row_mask:0xf bank_mask:0xf")
        slots = [self.slot(128 + gam * 8 + tau) for tau in range(8)]
        for uu in range(4):
            src = []
            for tau in range(8):
                t, r = slots[tau]
                if t == "a":
                    tmp = vRD + (uu & 1) * 8 + tau
                    A(f"v_accvgpr_read_b32 v{tmp}, a{r+uu}")
                    src.append(tmp)
                else:
                    src.append(r + uu)
            alo = vAT + (uu & 1) * 8
            ahi = alo + 4
            for u in range(4):
                A(f"v_perm_b32 v{alo+u}, v{src[2*u+1]}, v{src[2*u]}, s{sLO}")
            for u in range(4):
                A(f"v_perm_b32 v{ahi+u}, v{src[2*u+1]}, v{src[2*u]}, s{sHI}")
            for e, a_ in ((2 * uu, alo), (2 * uu + 1, ahi)):
                acc = vr(vACC + 4 * e, 4)
                A(f"v_mfma_f32_16x16x32_bf16 {acc}, {vr(a_,4)}, {vr(B,4)}, {'0' if gam == 0 else acc}")

    def prologue(self):
        A = self.A
        A("s_cmp_ge_u32 s2, 256")
        A("s_cbranch_scc1 L_end")
        A("s_load_dwordx16 s[4:19], s[0:1], 0")
        A("s_load_dwordx8 s[20:27], s[0:1], 64")
        A(f"v_lshrrev_b32 v{vT0}, 6, v0")
        A(f"v_and_b32 v{vL}, 63, v0")
        A(f"v_readfirstlane_b32 s3, v{vT0}")
        A(f"s_and_b32 s{sG}, s2, 7")
        A(f"s_lshr_b32 s{sJ}, s2, 3")
        A(f"v_lshlrev_b32 v{vV}, 4, v{vL}")
        A(f"v_bfe_u32 v{vK}, v{vL}, 2, 2")
        A(f"v_lshlrev_b32 v{vK}, 8, v{vK}")
        A(f"v_lshrrev_b32 v{vT0}, 4, v{vL}")
        A(f"v_lshl_add_u32 v{vK}, v{vT0}, 6, v{vK}")
        A(f"v_and_b32 v{vT0}, 3, v{vL}")
        A(f"v_lshl_add_u32 v{vK}, v{vT0}, 4, v{vK}")
        A(f"v_lshrrev_b32 v{vB}, 1, v{vL}")
        A(f"v_lshlrev_b32 v{vA}, 14, v{vB}")
        A(f"v_and_b32 v{vT0}, 1, v{vL}")
        A(f"v_lshl_add_u32 v{vA}, v{vT0}, 4, v{vA}")
        A(f"v_lshlrev_b32 v{vB}, 2, v{vB}")
        A(f"v_and_b32 v{vC}, 31, v{vL}")
        A(f"v_lshlrev_b32 v{vC}, 3, v{vC}")
        A(f"v_lshrrev_b32 v{vT0}, 5, v{vL}")
        A(f"v_lshl_add_u32 v{vC}, v{vT0}, 2, v{vC}")
        for i in range(4):
            A(f"v_mov_b32 v{vQ+i}, -1")
        if self.stamps:
            A(f"v_mov_b32 v{vST}, 0")
        A(f"s_mov_b32 s{sLO}, 0x05040100")
        A(f"s_mov_b32 s{sHI}, 0x07060302")
        A(f"s_lshl_b32 s{sBASE}, s{sJ}, 16")
        A(f"s_lshl_b32 s{sT}, s3, 10")
        A(f"s_add_u32 s{sBASE}, s{sBASE}, s{sT}")
        A(f"s_lshl_b32 s{sT1}, s{sG}, 24")
        A(f"s_lshl_b32 s{sU0}, s{sG}, 10")
        A(f"s_lshl_b32 s{sU1}, s{sJ}, 5")
        A(f"s_add_u32 s{sU0}, s{sU0}, s{sU1}")
        A(f"s_lshl_b32 s{sU1}, s3, 20")
        A(f"s_add_u32 s{sU0}, s{sU0}, s{sU1}")
        A(f"s_lshl_b32 s{sU1}, s3, 8")
        A("s_waitcnt lgkmcnt(0)")
        A(f"s_load_dword s{sE}, s[26:27], 0")

        def mk(s, p, n):
            A(f"s_mov_b32 s{s}, s{p}")
            A(f"s_mov_b32 s{s+1}, s{p+1}")
            A(f"s_mov_b32 s{s+2}, {n}")
            A(f"s_mov_b32 s{s+3}, 0x20000")
        mk(sX, 4, 1024)
        mk(sWQ, 10, 512 * 8192)
        zx = vZ
        self.id_x = self.load(f"buffer_load_dwordx4 {vr(zx,4)}, v{vV}, {srd(sX)}, 0 offen")
        self.load(f"buffer_load_dword v{zx+4}, v{vB}, {srd(sX)}, s{sU1} offen")
        self.id_xp = self.load(f"buffer_load_dword v{zx+5}, v{vB}, {srd(sX)}, s{sU1} offen offset:128")
        for i in range(4):
            off = (i & 1) * 8192 + (i >> 1) * 64 * 8192
            A(f"s_add_u32 s{sT}, s{sU0}, {off}")
            self.id_wq = self.load(f"buffer_load_dwordx4 {vr(zx+8+4*i,4)}, v{vA}, {srd(sWQ)}, s{sT} offen")
        A(f"s_add_u32 s{sK}, s6, s{sT1}")
        A(f"s_addc_u32 s{sK+1}, s7, 0")
        A(f"s_mov_b32 s{sK+2}, {16<<20}")
        A(f"s_mov_b32 s{sK+3}, 0x20000")
        A(f"s_add_u32 s{sV}, s8, s{sT1}")
        A(f"s_addc_u32 s{sV+1}, s9, 0")
        A(f"s_mov_b32 s{sV+2}, {16<<20}")
        A(f"s_mov_b32 s{sV+3}, 0x20000")
        mk(sWS, 26, WS_SIZE)
        self.mk = mk

    def prologue2(self):
        A = self.A
        mk = self.mk
        self.load(f"buffer_load_dword v{vX3}, v{vC}, {srd(sX)}, s{sU1} offen")
        A(f"s_lshl_b32 s{sU0}, s{sG}, 16")
        A(f"s_lshl_b32 s{sU1}, s{sJ}, 11")
        A(f"s_add_u32 s{sU0}, s{sU0}, s{sU1}")
        A(f"s_add_u32 s{sU0}, s{sU0}, {WS_O1}")
        A(f"s_lshl_b32 s{sU1}, s2, 11")
        A(f"s_add_u32 s{sU1}, s{sU1}, {WS_A3 - 2048}")
        A("s_cmp_lt_u32 s3, 2")
        A(f"s_cselect_b32 s{sU0}, s{sU0}, s{sU1}")
        A(f"s_lshl_b32 s{sU1}, s3, 10")
        A(f"s_add_u32 s{sU0}, s{sU0}, s{sU1}")
        A(f"buffer_store_dwordx4 {vr(vQ,4)}, v{vV}, {srd(sWS)}, s{sU0} offen sc1")
        A(f"s_lshl_b32 s{sP}, s{sG}, 12")
        A(f"s_lshr_b32 s{sU1}, s{sJ}, 4")
        A(f"s_lshl_b32 s{sU1}, s{sU1}, 11")
        A(f"s_add_u32 s{sP}, s{sP}, s{sU1}")
        A(f"s_and_b32 s{sU1}, s{sJ}, 15")
        A(f"s_lshl_b32 s{sU1}, s{sU1}, 7")
        A(f"s_add_u32 s{sP}, s{sP}, s{sU1}")
        A(f"s_add_u32 s{sP}, s{sP}, {WS_A2}")
        A("s_mov_b64 exec, 0xff")
        A(f"buffer_store_dwordx4 {vr(vQ,4)}, v{vV}, {srd(sWS)}, s{sP} offen sc1")
        A("s_mov_b64 exec, -1")
        mk(sWO, 12, 4096 * 1024)
        A("s_lshr_b32 s4, s2, 1")
        A("s_and_b32 s5, s2, 1")
        A("s_lshl_b32 s5, s5, 8")
        A("s_add_u32 s5, s5, s4")
        A("s_cmp_lt_u32 s5, 112")
        A("s_cselect_b32 s5, 1, 0")
        mk(sWG, 16, 0)
        mk(sWU, 18, 0)
        mk(sWD, 20, 0)
        A(f"s_cselect_b32 s{sWG+2}, {512*3584}, 0")
        A(f"s_cselect_b32 s{sWU+2}, {512*3584}, 0")
        A(f"s_cselect_b32 s{sWD+2}, {1792*1024}, 0")
        mk(sOUT, 22, 1024)

    def qphase(self):
        A = self.A
        zx = vZ
        t = vACC
        self.wait(self.id_xp)
        for u in range(4):
            A(f"v_lshlrev_b32 v{t+2*u}, 16, v{zx+u}")
            A(f"v_and_b32 v{t+2*u+1}, 0xffff0000, v{zx+u}")
        s = t + 8
        A(f"v_add_f32 v{s}, v{t}, v{t+1}")
        for i in range(2, 8):
            A(f"v_add_f32 v{s}, v{s}, v{t+i}")
        self.wave_sum_to_sgpr([s], [sU0])
        mean, var, mb, rs = t + 9, t + 10, t + 11, t + 12
        A(f"v_mov_b32 v{mean}, 0x3b000000")
        A(f"v_mul_f32 v{mean}, s{sU0}, v{mean}")
        for i in range(8):
            A(f"v_sub_f32 v{t+i}, v{t+i}, v{mean}")
        A(f"v_mul_f32 v{s}, v{t}, v{t}")
        for i in range(1, 8):
            A(f"v_fmac_f32 v{s}, v{t+i}, v{t+i}")
        self.wave_sum_to_sgpr([s], [sU0])
        A(f"v_mov_b32 v{var}, 0x3b000000")
        A(f"v_mul_f32 v{var}, s{sU0}, v{var}")
        self.ln_scalars(mean, var, mb, rs)
        xn = t + 14
        for i in range(2):
            A(f"v_lshlrev_b32 v{t+2*i}, 16, v{zx+4+i}")
            A(f"v_and_b32 v{t+2*i+1}, 0xffff0000, v{zx+4+i}")
            self.norm_pair(xn + i, t + 2 * i, t + 2 * i + 1, mb, rs)
        self.wait(self.id_wq)
        w = zx + 8
        p0, p1 = vAT, vAT + 8
        self.perm_pairs(p0, w, w + 4)
        self.perm_pairs(p1, w + 8, w + 12)
        acc = t + 16
        for c in range(8):
            A(f"v_dot2_f32_bf16 v{acc+c}, v{p0+c}, v{xn}, 0")
        for c in range(8):
            A(f"v_dot2_f32_bf16 v{acc+c}, v{p1+c}, v{xn+1}, v{acc+c}")
        self.tswap(32, [(acc + c, acc + c + 4) for c in range(4)])
        self.tswap(16, [(acc + c, acc + c + 2) for c in range(2)])
        for c in ("row_ror:4", "row_ror:8", "quad_perm:[2,3,0,1]"):
            for r in (acc, acc + 1):
                self.dpp("v_add_f32", r, r, r, c)
        ad = t
        A(f"v_and_b32 v{ad}, 1, v{vL}")
        A(f"v_lshlrev_b32 v{ad}, 5, v{ad}")
        A(f"v_lshrrev_b32 v{t+1}, 4, v{vL}")
        A(f"v_lshl_add_u32 v{ad}, v{t+1}, 3, v{ad}")
        A(f"s_lshl_b32 s{sU0}, s3, 6")
        A(f"v_add_u32 v{ad}, s{sU0}, v{ad}")
        A(f"v_mov_b32 v{t+2}, 0")
        A(f"s_mov_b32 exec_lo, 0x00030003")
        A(f"s_mov_b32 exec_hi, 0x00030003")
        A(f"ds_write_b64 v{ad}, {vr(acc,2)} offset:{L_QP}")
        A(f"ds_write_b32 v{t+2}, v{t+2} offset:{L_CNT}")
        A("s_mov_b64 exec, -1")
        A("s_waitcnt lgkmcnt(0)")
        A(f"s_add_u32 s{sE}, s{sE}, 1")
        A(f"s_and_b32 s{sTAG}, s{sE}, 0xff")
        A(f"s_mul_i32 s{sTAG}, s{sTAG}, 0x01010101")
        A(f"s_xor_b32 s{sTAG}, s{sTAG}, 0x33aa5500")
        A(f"s_and_b32 s{sT16}, s{sTAG}, 0xffff")
        A(f"s_mul_i32 s{sT2}, s{sT16}, 0x10001")
        A("s_barrier")
        skip = self.lab("Lq")
        A("s_cmp_lg_u32 s3, 0")
        A(f"s_cbranch_scc1 {skip}")
        A("s_mov_b64 exec, 0xf")
        for wv in range(4):
            A(f"ds_read_b128 {vr(t+4*wv,4)}, v{vV} offset:{L_QP+64*wv}")
        A(f"s_lshl_b32 s{sU0}, s{sG}, 11")
        A(f"s_lshl_b32 s{sU1}, s{sJ}, 6")
        A(f"s_add_u32 s{sU0}, s{sU0}, s{sU1}")
        A(f"s_add_u32 s{sU0}, s{sU0}, {WS_QB}")
        A("s_waitcnt lgkmcnt(0)")
        for i in range(4):
            A(f"v_add_f32 v{t+i}, v{t+i}, v{t+4+i}")
            A(f"v_add_f32 v{t+8+i}, v{t+8+i}, v{t+12+i}")
        for i in range(4):
            A(f"v_add_f32 v{t+i}, v{t+i}, v{t+8+i}")
        for i in range(4):
            self.rnd(t + i, t + i)
        for i in range(4):
            A(f"v_or_b32 v{t+i}, s{sT16}, v{t+i}")
        A(f"buffer_store_dwordx4 {vr(t,4)}, v{vV}, {srd(sWS)}, s{sU0} offen sc1")
        A("s_mov_b64 exec, -1")
        A(f"{skip}:")
        self.stamp("qpub")

    def qpoll_issue(self):
        A = self.A
        ad = vE + 2
        A(f"v_and_b32 v{ad}, 3, v{vL}")
        A(f"v_lshlrev_b32 v{ad}, 9, v{ad}")
        A(f"v_lshrrev_b32 v{vT0}, 2, v{vL}")
        A(f"v_lshl_add_u32 v{ad}, v{vT0}, 5, v{ad}")
        A(f"s_lshl_b32 s{sU2}, s{sG}, 11")
        A(f"s_add_u32 s{sU2}, s{sU2}, {WS_QB}")
        b = vACC
        self.q_loads = [[f"buffer_load_dwordx4 {vr(b,4)}, v{ad}, {srd(sWS)}, s{sU2} offen sc1",
                         f"buffer_load_dwordx4 {vr(b+4,4)}, v{ad}, {srd(sWS)}, s{sU2} offen offset:16 sc1"]]
        self.load(self.q_loads[0][0])
        self.id_q = self.load(self.q_loads[0][1])

    def qpoll_finish(self):
        A = self.A
        b = vACC
        t = vACC + 8

        def chk(k):
            for u in range(4):
                A(f"v_perm_b32 v{t+u}, v{b+2*u+1}, v{b+2*u}, s{sLO}")
            for u in range(4):
                A(f"v_xor_b32 v{t+u}, s{sT2}, v{t+u}")
            A(f"v_or3_b32 v{t}, v{t}, v{t+1}, v{t+2}")
            A(f"v_or_b32 v{t}, v{t}, v{t+3}")
            A(f"v_cmp_ne_u32 s[{sMISS}:{sMISS+1}], 0, v{t}")
        self.stamp("qchk")
        self.poll_finish(self.q_loads, chk, self.id_q)
        for u in range(4):
            A(f"v_perm_b32 v{vQ+u}, v{b+2*u+1}, v{b+2*u}, s{sHI}")
        self.stamp("qok")

    def expd(self, d, a, b):
        self.A(f"v_sub_f32 v{d}, v{a}, v{b}")
        self.A(f"v_mul_f32 v{d}, {LOG2E:#x}, v{d}")
        self.A(f"v_exp_f32 v{d}, v{d}")

    def stats_publish(self):
        A = self.A
        self.stamp("kdone")
        for z in range(32):
            A(f"v_sub_f32 v{vZ+z}, v{vZ+z}, v{vM}")
        for z in range(32):
            A(f"v_mul_f32 v{vZ+z}, {LOG2E:#x}, v{vZ+z}")
        for z in range(32):
            A(f"v_exp_f32 v{vZ+z}, v{vZ+z}")
        t = vAT
        for i in range(4):
            A(f"v_add_f32 v{t+i}, v{vZ+i}, v{vZ+4+i}")
        for z in range(8, 32):
            A(f"v_add_f32 v{t+(z&3)}, v{t+(z&3)}, v{vZ+z}")
        A(f"v_add_f32 v{t}, v{t}, v{t+1}")
        A(f"v_add_f32 v{t+2}, v{t+2}, v{t+3}")
        A(f"v_add_f32 v{vLs}, v{t}, v{t+2}")
        mw, lw, tt = t + 4, t + 5, t + 6
        A(f"v_mov_b32 v{mw}, v{vM}")
        self.allreduce_25("v_max_f32", mw, tt)
        self.expd(lw, vM, mw)
        A(f"v_mul_f32 v{lw}, v{lw}, v{vLs}")
        self.allreduce_25("v_add_f32", lw, tt)
        ad = t + 7
        A(f"v_lshlrev_b32 v{ad}, 3, v{vL}")
        A(f"s_lshl_b32 s{sU0}, s3, 5")
        A(f"v_add_u32 v{tt}, s{sU0}, v{ad}")
        A(f"v_mov_b32 v{t+8}, 0")
        A(f"v_mov_b32 v{t+9}, 1")
        A("s_mov_b64 exec, 0xf")
        A(f"ds_write_b64 v{tt}, {vr(mw,2)} offset:{L_STW}")
        A("s_mov_b64 exec, 1")
        A(f"ds_add_rtn_u32 v{t+10}, v{t+8}, v{t+9} offset:{L_CNT}")
        A("s_mov_b64 exec, -1")
        A(f"v_and_b32 v{ad}, 0x78, v{ad}")
        A("s_waitcnt lgkmcnt(0)")
        A(f"v_readfirstlane_b32 s{sU0}, v{t+10}")
        skip = self.lab("Ls")
        A(f"s_cmp_lg_u32 s{sU0}, 3")
        A(f"s_cbranch_scc1 {skip}")
        m, l = t + 8, t + 9
        A(f"ds_read_b64 {vr(m,2)}, v{ad} offset:{L_STW}")
        A(f"s_lshl_b32 s{sU0}, s{sG}, 11")
        A(f"s_lshl_b32 s{sU1}, s{sJ}, 6")
        A(f"s_add_u32 s{sU0}, s{sU0}, s{sU1}")
        A(f"s_add_u32 s{sU0}, s{sU0}, {WS_ST}")
        A(f"s_lshl_b32 s{sU1}, s2, 2")
        A(f"s_add_u32 s{sU1}, s{sU1}, {WS_FL}")
        A("s_waitcnt lgkmcnt(0)")
        o = t + 12
        A(f"v_mov_b32 v{o}, v{m}")
        self.dpp("v_max_f32", o, o, o, "row_ror:4")
        self.dpp("v_max_f32", o, o, o, "row_ror:8")
        self.expd(tt, m, o)
        A(f"v_mul_f32 v{l}, v{l}, v{tt}")
        self.dpp("v_add_f32", l, l, l, "row_ror:4")
        self.dpp("v_add_f32", l, l, l, "row_ror:8")
        A(f"v_or_b32 v{o}, s{sT16}, v{o}")
        A(f"v_and_b32 v{o+1}, 0xffff0000, v{l}")
        A(f"v_or_b32 v{o+1}, s{sT16}, v{o+1}")
        A(f"v_lshlrev_b32 v{o+2}, 16, v{l}")
        A(f"v_or_b32 v{o+2}, s{sT16}, v{o+2}")
        A(f"v_mov_b32 v{o+3}, s{sTAG}")
        A("s_mov_b64 exec, 0xf")
        A(f"buffer_store_dwordx4 {vr(o,4)}, v{vV}, {srd(sWS)}, s{sU0} offen sc1")
        A("s_mov_b64 exec, 1")
        A(f"buffer_store_dword v{o+3}, v{vV}, {srd(sWS)}, s{sU1} offen sc1")
        A("s_mov_b64 exec, -1")
        A(f"{skip}:")
        self.stamp("spub")

    def spoll_issue(self):
        A = self.A
        A(f"s_lshl_b32 s{sU2}, s{sG}, 11")
        A(f"s_add_u32 s{sU2}, s{sU2}, {WS_ST}")
        b = vACC
        self.s_loads = [[f"buffer_load_dwordx4 {vr(b,4)}, v{vV}, {srd(sWS)}, s{sU2} offen sc1",
                         f"buffer_load_dwordx4 {vr(b+4,4)}, v{vV}, {srd(sWS)}, s{sU2} offen offset:1024 sc1"]]
        self.load(self.s_loads[0][0])
        self.id_s = self.load(self.s_loads[0][1])

    def spoll_finish(self):
        A = self.A
        b = vACC
        t = vACC + 8

        def chk(k):
            A(f"v_perm_b32 v{t}, v{b+1}, v{b}, s{sLO}")
            A(f"v_perm_b32 v{t+1}, v{b+5}, v{b+4}, s{sLO}")
            A(f"v_perm_b32 v{t+2}, v{b+6}, v{b+2}, s{sLO}")
            for u in range(3):
                A(f"v_xor_b32 v{t+u}, s{sT2}, v{t+u}")
            A(f"v_or3_b32 v{t}, v{t}, v{t+1}, v{t+2}")
            A(f"v_cmp_ne_u32 s[{sMISS}:{sMISS+1}], 0, v{t}")
        self.stamp("schk")
        self.poll_finish(self.s_loads, chk, self.id_s)
        ma, mb, la, lb, M, tt, f = t, t + 1, t + 2, t + 3, t + 4, t + 5, t + 6
        A(f"v_and_b32 v{ma}, 0xffff0000, v{b}")
        A(f"v_and_b32 v{mb}, 0xffff0000, v{b+4}")
        A(f"v_perm_b32 v{la}, v{b+1}, v{b+2}, s{sHI}")
        A(f"v_perm_b32 v{lb}, v{b+5}, v{b+6}, s{sHI}")
        A(f"v_max_f32 v{M}, v{ma}, v{mb}")
        self.allreduce_25("v_max_f32", M, tt)
        self.expd(ma, ma, M)
        self.expd(mb, mb, M)
        A(f"v_mul_f32 v{la}, v{la}, v{ma}")
        A(f"v_fmac_f32 v{la}, v{lb}, v{mb}")
        self.allreduce_25("v_add_f32", la, tt)
        A(f"v_rcp_f32 v{lb}, v{la}")
        self.expd(f, vM, M)
        A(f"v_fma_f32 v{tt}, -v{la}, v{lb}, 1.0")
        A(f"v_fmac_f32 v{lb}, v{tt}, v{lb}")
        A(f"v_mul_f32 v{f}, v{f}, v{lb}")
        for z in range(32):
            A(f"v_mul_f32 v{vZ+z}, v{vZ+z}, v{f}")
        for G in range(4):
            for u in range(4):
                A(f"v_cvt_pk_bf16_f32 v{vZ+8*G+u}, v{vZ+8*G+2*u}, v{vZ+8*G+2*u+1}")
        self.stamp("sok")

    def weights_prep_addr(self):
        A = self.A
        A(f"v_bfe_u32 v{vA}, v{vL}, 3, 1")
        A(f"v_lshlrev_b32 v{vA}, 15, v{vA}")
        A(f"v_and_b32 v{vT0}, 7, v{vL}")
        A(f"v_lshl_add_u32 v{vA}, v{vT0}, 10, v{vA}")
        A(f"v_lshrrev_b32 v{vT0}, 4, v{vL}")
        A(f"v_lshl_add_u32 v{vA}, v{vT0}, 4, v{vA}")
        A(f"v_lshrrev_b32 v{vB}, 1, v{vL}")
        A(f"v_mul_u32_u24 v{vB}, {4*3584}, v{vB}")
        A(f"v_and_b32 v{vC}, 1, v{vL}")
        A(f"v_lshl_add_u32 v{vB}, v{vC}, 4, v{vB}")
        A(f"v_lshlrev_b32 v{vC}, 12, v{vT0}")
        A(f"v_and_b32 v{vT0}, 15, v{vL}")
        A(f"v_lshl_add_u32 v{vC}, v{vT0}, 4, v{vC}")
        A(f"s_lshl_b32 s6, s{sG}, 19")
        A(f"s_lshr_b32 s7, s{sJ}, 4")
        A("s_lshl_b32 s7, s7, 18")
        A("s_add_u32 s6, s6, s7")
        A("s_lshl_b32 s7, s3, 16")
        A("s_add_u32 s6, s6, s7")
        A(f"s_and_b32 s7, s{sJ}, 15")
        A("s_lshl_b32 s7, s7, 6")
        A("s_add_u32 s6, s6, s7")
        A(f"s_mul_i32 s7, s3, {128*3584}")
        A("s_lshl_b32 s8, s4, 5")
        A("s_add_u32 s7, s7, s8")
        A("s_lshl_b32 s8, s4, 14")
        A("s_lshl_b32 s9, s3, 8")
        A("s_add_u32 s8, s8, s9")

    def issue_weight(self, k):
        A = self.A
        grp, i = k >> 2, k & 3
        if grp == 0:
            A(f"s_add_u32 s{sT}, s6, {i*8192}")
            self.id_wo = self.load(f"buffer_load_dwordx4 {vr(vZ+8*i+4,4)}, v{vA}, {srd(sWO)}, s{sT} offen nt")
        elif grp in (1, 2):
            A(f"s_add_u32 s{sT}, s7, {i*3584}")
            self.load(f"buffer_load_dwordx4 {vr(128+(k-4)*4,4,'a')}, v{vB}, {srd(sWG if grp == 1 else sWU)}, s{sT} offen")
        else:
            self.load(f"buffer_load_dwordx4 {vr(128+(k-4)*4,4,'a')}, v{vC}, {srd(sWD)}, s8 offen offset:{i*1024} nt")

    def tail(self):
        A = self.A
        self.stamp("vdone")
        t = vAT
        ad = vE + 2
        A(f"v_and_b32 v{ad}, 3, v{vL}")
        A(f"v_lshrrev_b32 v{vT0}, 4, v{vL}")
        A(f"v_lshl_add_u32 v{ad}, v{ad}, 2, v{vT0}")
        A(f"v_mul_u32_u24 v{ad}, 144, v{ad}")
        A(f"s_mul_i32 s{sU0}, s3, 2304")
        A(f"v_add_u32 v{ad}, s{sU0}, v{ad}")
        rd = vE + 3
        A(f"s_and_b32 s{sU1}, s3, 1")
        A(f"s_mul_i32 s{sU0}, s{sU1}, {8*144}")
        A(f"v_lshrrev_b32 v{rd}, 3, v{vL}")
        A(f"v_mul_u32_u24 v{rd}, 144, v{rd}")
        A(f"v_and_b32 v{vT0}, 7, v{vL}")
        A(f"v_lshl_add_u32 v{rd}, v{vT0}, 4, v{rd}")
        A(f"v_add_u32 v{rd}, s{sU0}, v{rd}")
        A("s_mov_b32 exec_lo, 0x000f000f")
        A("s_mov_b32 exec_hi, 0x000f000f")
        for e in range(8):
            A(f"ds_write_b128 v{ad}, {vr(vACC+4*e,4)} offset:{L_OP+16*e}")
        A("s_mov_b64 exec, -1")
        A(f"s_lshl_b32 s{sU0}, s{sG}, 16")
        A(f"s_add_u32 s{sU2}, s{sU0}, {WS_O1}")
        A(f"s_lshl_b32 s{sU0}, s{sJ}, 11")
        A(f"s_add_u32 s{sU0}, s{sU0}, s{sU2}")
        A(f"s_lshl_b32 s{sU1}, s{sU1}, 10")
        A(f"s_add_u32 s{sU0}, s{sU0}, s{sU1}")
        A("s_waitcnt lgkmcnt(0)")
        A("s_barrier")
        skip = self.lab("Lo")
        A("s_cmp_gt_u32 s3, 1")
        A(f"s_cbranch_scc1 {skip}")
        for wv in range(4):
            A(f"ds_read_b128 {vr(t+4*wv,4)}, v{rd} offset:{L_OP+2304*wv}")
        A("s_waitcnt lgkmcnt(2)")
        A(f"v_pk_add_f32 {vr(t,2)}, {vr(t,2)}, {vr(t+4,2)}")
        A(f"v_pk_add_f32 {vr(t+2,2)}, {vr(t+2,2)}, {vr(t+6,2)}")
        A("s_waitcnt lgkmcnt(0)")
        A(f"v_pk_add_f32 {vr(t+8,2)}, {vr(t+8,2)}, {vr(t+12,2)}")
        A(f"v_pk_add_f32 {vr(t+10,2)}, {vr(t+10,2)}, {vr(t+14,2)}")
        A(f"v_pk_add_f32 {vr(t,2)}, {vr(t,2)}, {vr(t+8,2)}")
        A(f"v_pk_add_f32 {vr(t+2,2)}, {vr(t+2,2)}, {vr(t+10,2)}")
        A(f"buffer_store_dwordx4 {vr(t,4)}, v{vV}, {srd(sWS)}, s{sU0} offen sc1")
        A(f"{skip}:")
        self.stamp("opub")
        pa = vE + 2
        A(f"v_lshrrev_b32 v{pa}, 4, v{vL}")
        A(f"v_lshlrev_b32 v{pa}, 11, v{pa}")
        A(f"v_and_b32 v{vT0}, 15, v{vL}")
        A(f"v_lshl_add_u32 v{pa}, v{vT0}, 4, v{pa}")
        A(f"s_lshr_b32 s{sU0}, s{sJ}, 4")
        A(f"s_lshl_b32 s{sU0}, s{sU0}, 10")
        A(f"s_add_u32 s{sU2}, s{sU2}, s{sU0}")
        A(f"s_lshl_b32 s{sU0}, s3, 8")
        A(f"s_add_u32 s{sU2}, s{sU2}, s{sU0}")
        for k in range(8):
            A(f"s_add_u32 s{10+k}, s{sU2}, {k*8192}")
        pb = vRING
        loads = [f"buffer_load_dwordx4 {vr(pb+4*k,4)}, v{pa}, {srd(sWS)}, s{10+k} offen sc1" for k in range(8)]
        self.poll_issue(loads)
        self.wait(self.id_wo)
        w2 = vACC
        self.perm_pairs(w2, vZ + 4, vZ + 12)
        self.perm_pairs(w2 + 8, vZ + 20, vZ + 28)
        self.poll_finish(loads, self.check_sentinel(pb))
        self.stamp("hop1")
        for step in (4, 2, 1):
            for k in range(step):
                for h in (0, 2):
                    A(f"v_pk_add_f32 {vr(pb+4*k+h,2)}, {vr(pb+4*k+h,2)}, {vr(pb+4*(k+step)+h,2)}")
        self.tswap(32, [(pb, pb + 2), (pb + 1, pb + 3)])
        A(f"v_mov_b32 v{pb+2}, v{pb}")
        A(f"v_mov_b32 v{pb+3}, v{pb+1}")
        self.tswap(16, [(pb, pb + 2), (pb + 1, pb + 3)])
        A(f"v_cvt_pk_bf16_f32 v{pb}, v{pb}, v{pb+1}")
        A(f"v_mov_b32 v{pb+1}, v{pb}")
        A(f"v_permlane32_swap_b32 v{pb}, v{pb+1}")
        acc = pb + 4
        for c in range(8):
            A(f"v_dot2_f32_bf16 v{acc+c}, v{w2+c}, v{pb}, 0")
        for c in range(8):
            A(f"v_dot2_f32_bf16 v{acc+c}, v{w2+8+c}, v{pb+1}, v{acc+c}")
        r1 = acc + 8
        for c in range(4):
            self.dpp("v_add_f32", r1 + c, acc + c, acc + c, "row_ror:8", bank=0x3)
            self.dpp("v_add_f32", r1 + c, acc + c + 4, acc + c + 4, "row_ror:8", bank=0xc)
        r2 = r1 + 4
        for c in range(2):
            self.dpp("v_add_f32", r2 + c, r1 + c, r1 + c, "row_ror:12", bank=0x5)
            self.dpp("v_add_f32", r2 + c, r1 + c + 2, r1 + c + 2, "row_ror:4", bank=0xa)
        for q in ("quad_perm:[1,0,3,2]", "quad_perm:[2,3,0,1]"):
            for c in range(2):
                self.dpp("v_add_f32", r2 + c, r2 + c, r2 + c, q)
        A(f"v_lshlrev_b32 v{vT0}, 1, v{vL}")
        A(f"s_lshl_b32 s{sU0}, s3, 7")
        A(f"v_add_u32 v{vT0}, s{sU0}, v{vT0}")
        A("s_mov_b32 exec_lo, 0x11111111")
        A("s_mov_b32 exec_hi, 0x11111111")
        A(f"ds_write_b64 v{vT0}, {vr(r2,2)} offset:{L_S2}")
        A("s_mov_b64 exec, -1")
        A("s_waitcnt lgkmcnt(0)")
        A("s_barrier")
        skip = self.lab("La")
        A("s_cmp_lg_u32 s3, 0")
        A(f"s_cbranch_scc1 {skip}")
        A("s_mov_b64 exec, 0xff")
        for wv in range(4):
            A(f"ds_read_b128 {vr(t+4*wv,4)}, v{vV} offset:{L_S2+128*wv}")
        A("s_waitcnt lgkmcnt(2)")
        A(f"v_pk_add_f32 {vr(t,2)}, {vr(t,2)}, {vr(t+4,2)}")
        A(f"v_pk_add_f32 {vr(t+2,2)}, {vr(t+2,2)}, {vr(t+6,2)}")
        A("s_waitcnt lgkmcnt(0)")
        A(f"v_pk_add_f32 {vr(t+8,2)}, {vr(t+8,2)}, {vr(t+12,2)}")
        A(f"v_pk_add_f32 {vr(t+10,2)}, {vr(t+10,2)}, {vr(t+14,2)}")
        A(f"v_pk_add_f32 {vr(t,2)}, {vr(t,2)}, {vr(t+8,2)}")
        A(f"v_pk_add_f32 {vr(t+2,2)}, {vr(t+2,2)}, {vr(t+10,2)}")
        A(f"buffer_store_dwordx4 {vr(t,4)}, v{vV}, {srd(sWS)}, s{sP} offen sc1")
        A("s_mov_b64 exec, -1")
        A(f"{skip}:")
        self.stamp("apub")
        A("s_cmp_eq_u32 s5, 0")
        A("s_cbranch_scc1 L_fin")
        fb = vRING + 64
        A(f"s_mov_b32 s{sU2}, {WS_FL}")
        fl = [f"buffer_load_dwordx4 {vr(fb,4)}, v{vV}, {srd(sWS)}, s{sU2} offen sc1"]
        self.poll_issue(fl)
        vW = vRING + 72
        for m in range(3):
            for i in range(16):
                A(f"v_accvgpr_read_b32 v{vRD+i}, a{128+16*m+i}")
            self.perm_pairs(vW + 16 * m, vRD, vRD + 4)
            self.perm_pairs(vW + 16 * m + 8, vRD + 8, vRD + 12)

        def chkf(k):
            for u in range(4):
                A(f"v_xor_b32 v{vE+4+u}, s{sTAG}, v{fb+u}")
            A(f"v_or3_b32 v{vE+4}, v{vE+4}, v{vE+5}, v{vE+6}")
            A(f"v_or_b32 v{vE+4}, v{vE+4}, v{vE+7}")
            A(f"v_cmp_ne_u32 s[{sMISS}:{sMISS+1}], 0, v{vE+4}")
        self.poll_finish(fl, chkf)
        A(f"v_lshrrev_b32 v{pa}, 5, v{vL}")
        A(f"v_lshlrev_b32 v{pa}, 11, v{pa}")
        A(f"v_and_b32 v{vT0}, 31, v{vL}")
        A(f"v_lshl_add_u32 v{pa}, v{vT0}, 4, v{pa}")
        A(f"s_lshl_b32 s{sU0}, s3, 9")
        for k in range(8):
            A(f"s_add_u32 s{10+k}, s{sU0}, {WS_A2 + k*4096}")
        self.poll_issue(loads)
        x0, x1, hadr, radr, gadr = vE + 4, vE + 5, vE + 6, vE + 7, vE + 3
        A(f"v_lshlrev_b32 v{x0}, 16, v{vX3}")
        A(f"v_and_b32 v{x1}, 0xffff0000, v{vX3}")
        A(f"v_lshlrev_b32 v{hadr}, 3, v{vT0}")
        A(f"v_lshrrev_b32 v{vT0}, 5, v{vL}")
        A(f"v_lshl_add_u32 v{hadr}, v{vT0}, 2, v{hadr}")
        A(f"s_lshl_b32 s{sU0}, s3, 8")
        A(f"v_add_u32 v{hadr}, s{sU0}, v{hadr}")
        A(f"v_lshrrev_b32 v{radr}, 1, v{vL}")
        A(f"v_lshlrev_b32 v{radr}, 3, v{radr}")
        A(f"v_add_u32 v{radr}, s{sU0}, v{radr}")
        A(f"v_lshrrev_b32 v{gadr}, 5, v{vL}")
        A(f"v_lshlrev_b32 v{gadr}, 8, v{gadr}")
        A(f"v_and_b32 v{vT0}, 1, v{vL}")
        A(f"v_lshl_add_u32 v{gadr}, v{vT0}, 7, v{gadr}")
        A(f"v_bfe_u32 v{vT0}, v{vL}, 4, 1")
        A(f"v_lshl_add_u32 v{gadr}, v{vT0}, 6, v{gadr}")
        A(f"s_lshl_b32 s{sU0}, s3, 2")
        A(f"v_add_u32 v{gadr}, s{sU0}, v{gadr}")
        self.poll_finish(loads, self.check_sentinel(pb))
        self.stamp("hop2")
        for step in (4, 2, 1):
            for k in range(step):
                for h in (0, 2):
                    A(f"v_pk_add_f32 {vr(pb+4*k+h,2)}, {vr(pb+4*k+h,2)}, {vr(pb+4*(k+step)+h,2)}")
        self.tswap(32, [(pb, pb + 2), (pb + 1, pb + 3)])
        h0, h1, s1, s2, hp = pb, pb + 1, pb + 4, pb + 5, pb + 6
        self.rnd(h0, h0)
        self.rnd(h1, h1)
        A(f"v_add_f32 v{h0}, v{h0}, v{x0}")
        A(f"v_add_f32 v{h1}, v{h1}, v{x1}")
        A(f"v_cvt_pk_bf16_f32 v{hp}, v{h0}, v{h1}")
        A(f"v_lshlrev_b32 v{h0}, 16, v{hp}")
        A(f"v_and_b32 v{h1}, 0xffff0000, v{hp}")
        A(f"ds_write_b32 v{hadr}, v{hp} offset:{L_H}")
        A(f"v_add_f32 v{s1}, v{h0}, v{h1}")
        A(f"v_mul_f32 v{s2}, v{h0}, v{h0}")
        A(f"v_fmac_f32 v{s2}, v{h1}, v{h1}")
        for c in ("row_ror:8", "row_ror:4", "row_ror:2", "row_ror:1"):
            for r in (s1, s2):
                self.dpp("v_add_f32", r, r, r, c)
        for r in (s1, s2):
            self.dpp("v_add_f32", r, r, r, "row_bcast:15", row=0xa)
        for r in (s1, s2):
            self.dpp("v_add_f32", r, r, r, "row_bcast:31", row=0xc)
        A(f"s_lshl_b32 s{sU0}, s3, 3")
        A(f"v_mov_b32 v{vT0}, s{sU0}")
        A(f"v_mov_b32 v{pb+7}, 0")
        A("s_mov_b32 exec_lo, 0")
        A("s_mov_b32 exec_hi, 0x80000000")
        A(f"ds_write_b64 v{vT0}, {vr(s1,2)} offset:{L_LNS}")
        A("s_mov_b64 exec, -1")
        A("s_waitcnt lgkmcnt(0)")
        A("s_barrier")
        q = pb + 8
        A(f"ds_read_b128 {vr(q,4)}, v{pb+7} offset:{L_LNS}")
        A(f"ds_read_b128 {vr(q+4,4)}, v{pb+7} offset:{L_LNS+16}")
        A("s_waitcnt lgkmcnt(0)")
        A(f"v_pk_add_f32 {vr(q,2)}, {vr(q,2)}, {vr(q+2,2)}")
        A(f"v_pk_add_f32 {vr(q+4,2)}, {vr(q+4,2)}, {vr(q+6,2)}")
        A(f"v_pk_add_f32 {vr(q,2)}, {vr(q,2)}, {vr(q+4,2)}")
        mean, var, mb, rs = q, q + 1, q + 2, q + 3
        A(f"v_mul_f32 v{mean}, 0x3b000000, v{mean}")
        A(f"v_mul_f32 v{var}, 0x3b000000, v{var}")
        A(f"v_fma_f32 v{var}, -v{mean}, v{mean}, v{var}")
        self.ln_scalars(mean, var, mb, rs)
        self.norm_pair(hp, h0, h1, mb, rs)
        A(f"ds_write_b32 v{hadr}, v{hp} offset:{L_HN}")
        A(f"ds_read_b64 {vr(q+4,2)}, v{radr} offset:{L_HN}")
        A("s_waitcnt lgkmcnt(0)")
        hn = q + 4
        acc = pb + 16
        for m in range(2):
            for c in range(8):
                A(f"v_dot2_f32_bf16 v{acc+8*m+c}, v{vW+16*m+c}, v{hn}, 0")
        for m in range(2):
            for c in range(8):
                A(f"v_dot2_f32_bf16 v{acc+8*m+c}, v{vW+16*m+8+c}, v{hn+1}, v{acc+8*m+c}")
        self.tswap(32, [(acc + c, acc + 8 + c) for c in range(8)])
        self.tswap(16, [(acc + c, acc + 4 + c) for c in range(4)])
        for c in ("row_ror:4", "row_ror:8", "quad_perm:[2,3,0,1]"):
            for r in range(4):
                self.dpp("v_add_f32", acc + r, acc + r, acc + r, c)
        A("s_mov_b32 exec_lo, 0x00030003")
        A("s_mov_b32 exec_hi, 0x00030003")
        for r in range(4):
            A(f"ds_write_b32 v{gadr}, v{acc+r} offset:{L_GU+16*r}")
        A("s_mov_b64 exec, -1")
        A(f"v_and_b32 v{vT0}, 0xf0, v{vV}")
        A(f"v_lshrrev_b32 v{radr}, 4, v{vL}")
        A(f"v_lshlrev_b32 v{radr}, 3, v{radr}")
        A(f"s_lshl_b32 s{sU0}, s3, 5")
        A(f"v_add_u32 v{radr}, s{sU0}, v{radr}")
        A(f"v_lshlrev_b32 v{hadr}, 1, v{vL}")
        A(f"v_add_u32 v{hadr}, s{sU0}, v{hadr}")
        A(f"v_lshlrev_b32 v{gadr}, 1, v{vT0}")
        A(f"v_lshrrev_b32 v{x0}, 5, v{vL}")
        A(f"v_lshl_add_u32 v{gadr}, v{x0}, 4, v{gadr}")
        A(f"v_bfe_u32 v{x0}, v{vL}, 4, 1")
        A(f"v_lshl_add_u32 v{gadr}, v{x0}, 3, v{gadr}")
        A(f"s_lshl_b32 s{sU1}, s2, 11")
        A(f"s_lshl_b32 s{sU0}, s3, 9")
        A(f"s_add_u32 s{sU1}, s{sU1}, s{sU0}")
        A(f"s_add_u32 s{sU1}, s{sU1}, {WS_A3}")
        A("s_waitcnt lgkmcnt(0)")
        A("s_barrier")
        A(f"ds_read_b128 {vr(q,4)}, v{vT0} offset:{L_GU}")
        A(f"ds_read_b128 {vr(q+4,4)}, v{vT0} offset:{L_GU+256}")
        A("s_waitcnt lgkmcnt(0)")
        A(f"v_pk_add_f32 {vr(q,2)}, {vr(q,2)}, {vr(q+2,2)}")
        A(f"v_pk_add_f32 {vr(q+4,2)}, {vr(q+4,2)}, {vr(q+6,2)}")
        A(f"v_add_f32 v{q}, v{q}, v{q+1}")
        A(f"v_add_f32 v{q+4}, v{q+4}, v{q+5}")
        self.rnd(q, q)
        self.rnd(q + 4, q + 4)
        A(f"v_max_f32 v{q}, 0, v{q}")
        A(f"v_mul_f32 v{q}, v{q}, v{q+4}")
        A(f"v_cvt_pk_bf16_f32 v{q}, v{q}, v{q}")
        A("s_mov_b64 exec, 0xffff")
        A(f"ds_write_b16 v{hadr}, v{q} offset:{L_F}")
        A("s_mov_b64 exec, -1")
        A(f"ds_read_b64 {vr(q+4,2)}, v{radr} offset:{L_F}")
        A("s_waitcnt lgkmcnt(0)")
        for c in range(8):
            A(f"v_dot2_f32_bf16 v{acc+c}, v{vW+32+c}, v{q+4}, 0")
        for c in range(8):
            A(f"v_dot2_f32_bf16 v{acc+c}, v{vW+40+c}, v{q+5}, v{acc+c}")
        self.tswap(32, [(acc + c, acc + 4 + c) for c in range(4)])
        self.tswap(16, [(acc + c, acc + 2 + c) for c in range(2)])
        A(f"buffer_store_dwordx2 {vr(acc,2)}, v{gadr}, {srd(sWS)}, s{sU1} offen sc1")
        self.stamp("dpub")
        A("s_lshl_b32 s9, s3, 8")
        A("s_add_u32 s9, s9, s4")
        A("s_cmp_ge_u32 s9, 32")
        A("s_cbranch_scc1 L_fin")
        A(f"v_lshrrev_b32 v{pa}, 2, v{vL}")
        A(f"v_lshlrev_b32 v{pa}, 12, v{pa}")
        A(f"v_and_b32 v{vT0}, 3, v{vL}")
        A(f"v_lshl_add_u32 v{pa}, v{vT0}, 4, v{pa}")
        A(f"s_lshl_b32 s{sU0}, s4, 6")
        for k in range(7):
            A(f"s_add_u32 s{10+k}, s{sU0}, {WS_A3 + k*65536}")
        self.poll_issue(loads[:7])
        A(f"v_lshlrev_b32 v{x0}, 3, v{vT0}")
        A(f"v_lshrrev_b32 v{x1}, 5, v{vL}")
        A(f"v_lshl_add_u32 v{x0}, v{x1}, 2, v{x0}")
        A(f"v_bfe_u32 v{x1}, v{vL}, 4, 1")
        A(f"v_lshl_add_u32 v{x0}, v{x1}, 1, v{x0}")
        A(f"s_lshl_b32 s{sU0}, s4, 5")
        A(f"v_add_u32 v{x0}, s{sU0}, v{x0}")
        A(f"ds_read_u16 v{x1}, v{x0} offset:{L_H}")
        A(f"v_mov_b32 v{hadr}, s{sE}")
        A("s_waitcnt lgkmcnt(0)")
        A(f"v_lshlrev_b32 v{x1}, 16, v{x1}")
        self.poll_finish(loads[:7], self.check_sentinel(pb))
        self.stamp("hop3")
        for (a_, b_) in ((0, 4), (1, 5), (2, 6), (0, 2), (1, 3), (0, 1)):
            for h in (0, 2):
                A(f"v_pk_add_f32 {vr(pb+4*a_+h,2)}, {vr(pb+4*a_+h,2)}, {vr(pb+4*b_+h,2)}")
        self.tswap(32, [(pb, pb + 2), (pb + 1, pb + 3)])
        self.tswap(16, [(pb, pb + 1)])
        self.dpp("v_add_f32", pb, pb, pb, "row_ror:4")
        self.dpp("v_add_f32", pb, pb, pb, "row_ror:8")
        self.rnd(pb, pb)
        A(f"v_add_f32 v{pb}, v{pb}, v{x1}")
        A(f"v_cvt_pk_bf16_f32 v{pb}, v{pb}, v{pb}")
        A("s_mov_b32 exec_lo, 0x000f000f")
        A("s_mov_b32 exec_hi, 0x000f000f")
        A(f"buffer_store_short v{pb}, v{x0}, {srd(sOUT)}, 0 offen")
        A("s_cmp_lg_u32 s4, 0")
        A("s_cbranch_scc1 L_fin")
        A("s_mov_b64 exec, 1")
        A(f"buffer_store_dword v{hadr}, v{vV}, {srd(sWS)}, 0 offen sc1")
        A("L_fin:")
        A("s_mov_b64 exec, -1")
        if self.stamps:
            self.stamp("end")
            A(f"s_getreg_b32 s{sU0}, hwreg(HW_REG_XCC_ID)")
            A(f"v_writelane_b32 v{vST}, s{sU0}, 63")
            A(f"s_lshl_b32 s{sU0}, s2, 10")
            A(f"s_lshl_b32 s{sU1}, s3, 8")
            A(f"s_add_u32 s{sU0}, s{sU0}, s{sU1}")
            A(f"s_add_u32 s{sU0}, s{sU0}, {WS_STAMP}")
            A(f"v_lshlrev_b32 v{vT0}, 2, v{vL}")
            A(f"buffer_store_dword v{vST}, v{vT0}, {srd(sWS)}, s{sU0} offen")
        A("L_end:")
        A("s_endpgm")

    def body(self):
        W, R, G = self.W, self.R, 8
        N = 256
        self.prologue()
        self.stamp("start")
        ids = {}
        issued = 0
        cons = 0
        nw = 0
        qdone = sdone = False
        hooks = {W: [self.prologue2, self.qphase], self.pq: [self.qpoll_issue], 128 + self.ps: [self.spoll_issue],
                 128: [self.weights_prep_addr]}
        while cons < N:
            if issued < N:
                must = issued + G - R
                tgt = max(issued - W + G, 0)
            else:
                must = tgt = N
            lim = cons + self.slope * G
            want = max(must, min(tgt, lim))
            if issued >= N:
                want = min(N, cons + G)
            if not qdone and issued < self.holdq:
                want = 0
            if cons >= 128 and not sdone and issued < min(128 + self.holds, N):
                want = 128
            if cons < 128:
                want = min(want, 128)
            while cons < want:
                if not qdone:
                    self.qpoll_finish()
                    qdone = True
                if cons >= 128 and not sdone:
                    self.spoll_finish()
                    sdone = True
                n = cons + G
                self.wait(ids[n - 1])
                if cons < 128:
                    for i in range(cons, n):
                        self.consume_k(i)
                else:
                    self.consume_v_group((cons - 128) // 8)
                cons = n
                if cons == 128:
                    self.stats_publish()
            if issued < N:
                assert issued + G - R <= cons
                if issued - (W - G) > 0:
                    self.wait(ids[issued - (W - G) - 1])
                for i in range(issued, issued + G):
                    ids[i] = self.issue_stream(i)
                issued += G
                for h in hooks.get(issued, []):
                    h()
                if issued == N:
                    assert sdone and cons >= 192, (sdone, cons)
                    for k in range(16):
                        self.issue_weight(k)
        self.tail()

    def text(self):
        self.body()
        lines, nn = asmlib.pad(self.L)
        hdr = [
            "; Fused pre-LN GQA decode block + ReGLU MLP, one persistent launch (generated by work/gen.py).",
            f"; @launch grid=(256,1,1) block=(256,1,1) lds={LDS_BYTES}",
            '.amdgcn_target "amdgcn-amd-amdhsa--gfx950"', ".text", f".globl {NAME}", ".p2align 8",
            f".type {NAME},@function", f"{NAME}:"]
        ftr = ['.section .rodata,"a"', ".p2align 6", f".amdhsa_kernel {NAME}",
               "  .amdhsa_next_free_vgpr 512", "  .amdhsa_next_free_sgpr 102", "  .amdhsa_accum_offset 256",
               "  .amdhsa_group_segment_fixed_size 0", "  .amdhsa_kernarg_size 96", "  .amdhsa_user_sgpr_count 2",
               "  .amdhsa_user_sgpr_kernarg_segment_ptr 1", "  .amdhsa_system_sgpr_workgroup_id_x 1", ".end_amdhsa_kernel"]
        if self.stamps:
            hdr.insert(1, "; stamps: " + " ".join(self.stamp_names))
        return "\n".join(hdr + lines + ftr) + "\n"


if __name__ == "__main__":
    out = sys.argv[1]
    kw = eval("dict(" + (sys.argv[2] if len(sys.argv) > 2 else "") + ")")
    open(out, "w").write(Gen(**kw).text())
```

```python
import sys, os
sys.path.insert(0, os.path.dirname(os.path.abspath(__file__)))
import asmlib

NAME = "sequential_preLN__gqa_block_cached__glu_gated_reglu__decode_kernel"

WS_QB = 0x1000
WS_FL = 0x6000
WS_ST = 0x8000
WS_O1 = 0x10000
WS_A2 = 0x100000
WS_A3 = 0x110000
WS_STAMP = 0x200000
WS_SIZE = 0x300000
L_QP = 0
L_CNT = 256
L_STW = 512
L_OP = 1024
L_S2 = 10240
L_LNS = 10752
L_H = 11264
L_HN = 12288
L_GU = 13312
L_F = 13824
LDS_BYTES = 16384
sG, sJ, sE, sTAG = 28, 29, 30, 31
sK, sV, sWS, sX, sWQ, sWO, sWG, sWU, sWD, sOUT = 32, 36, 40, 44, 48, 52, 56, 60, 64, 68
sBASE, sT, sLO, sHI = 72, 73, 74, 75
sT16, sT2, sSPIN, sT1, sP = 76, 77, 78, 79, 80
sU0, sU1, sU2 = 81, 82, 83
sT0 = 14
sM = 84
sMISS = 86
vL, vT0, vV, vK = 0, 1, 2, 3
vX3, vM, vLs, vST = 4, 5, 6, 7
vQ = 8
vA, vB, vC, vD = 12, 13, 14, 15
vZ = 16
vACC = 48
vAT = 80
vRD = 96
vBS = 112
vE = 120
vRING = 128
LOG2E = 0x3fb8aa3b
SPIN_LIMIT = 200000


def srd(i):
    return f"s[{i}:{i+3}]"


def vr(i, n=1, k="v"):
    return f"{k}{i}" if n == 1 else f"{k}[{i}:{i+n-1}]"


class Gen:
    def __init__(self, W=16, holdq=72, pq=56, holds=72, ps=56, slope=3, stamps=False, R=96, gmap=0, qat=24, W0=16, W2=None, Wat=256,
                 pace=0, pace0=0, pace_from=3, pace_to=31, wat=216, dbg=''):
        self.dbg = dbg
        self.W0, self.W2, self.Wat, self.wat = W0, (W2 or W), Wat, wat
        self.pace, self.pace0, self.pace_from, self.pace_to = pace, pace0, pace_from, pace_to
        self.gmap = gmap
        self.qat = qat
        self.W, self.holdq, self.pq, self.holds, self.ps, self.slope = W, holdq, pq, holds, ps, slope
        self.stamps = stamps
        self.R = R
        self.L = []
        self.nload = 0
        self.done = 0
        self.nlab = 0
        self.nstamp = 0
        self.stamp_names = []

    def A(self, s):
        self.L.append("  " + s if not s.endswith(":") else s)

    def lab(self, p="L"):
        self.nlab += 1
        return f"{p}_{self.nlab}"

    def load(self, text):
        self.A(text)
        self.nload += 1
        return self.nload

    def wait(self, lid):
        if lid <= self.done:
            return
        n = self.nload - lid
        self.A(f"s_waitcnt vmcnt({min(n, 63)})")
        self.done = lid if n <= 63 else self.nload - 63

    def waitall(self):
        self.A("s_waitcnt vmcnt(0)")
        self.done = self.nload

    def stamp(self, name):
        if not self.stamps:
            return
        A = self.A
        A("s_memrealtime vcc")
        A("s_waitcnt lgkmcnt(0)")
        A(f"v_writelane_b32 v{vST}, vcc_lo, {self.nstamp}")
        self.stamp_names.append(name)
        self.nstamp += 1

    def dpp(self, op, d, s0, s1, ctrl, bank=0xf, row=0xf):
        self.A(f"{op}_dpp v{d}, v{s0}, v{s1} {ctrl} row_mask:{row:#x} bank_mask:{bank:#x}")

    def wave_sum_to_sgpr(self, regs, sdst):
        for c in ("row_ror:8", "row_ror:4", "row_ror:2", "row_ror:1"):
            for r in regs:
                self.dpp("v_add_f32", r, r, r, c)
        for r in regs:
            self.dpp("v_add_f32", r, r, r, "row_bcast:15", row=0xa)
        for r in regs:
            self.dpp("v_add_f32", r, r, r, "row_bcast:31", row=0xc)
        for r, s in zip(regs, sdst):
            self.A(f"v_readlane_b32 s{s}, v{r}, 63")

    def allreduce_25(self, op, x, t):
        self.dpp(op, x, x, x, "row_ror:4")
        self.dpp(op, x, x, x, "row_ror:8")
        for sw in ("v_permlane16_swap_b32", "v_permlane32_swap_b32"):
            self.A(f"v_mov_b32 v{t}, v{x}")
            self.A(f"{sw} v{x}, v{t}")
            self.A(f"{op} v{x}, v{x}, v{t}")

    def tswap(self, which, pairs):
        sw = "v_permlane32_swap_b32" if which == 32 else "v_permlane16_swap_b32"
        for x, y in pairs:
            self.A(f"{sw} v{x}, v{y}")
        for x, y in pairs:
            self.A(f"v_add_f32 v{x}, v{x}, v{y}")

    def rnd(self, d, s):
        self.A(f"v_cvt_pk_bf16_f32 v{d}, 0, v{s}")

    def ln_scalars(self, vmean, vvar, vmb, vrs):
        A = self.A
        self.rnd(vmb, vmean)
        self.rnd(vrs, vvar)
        A(f"v_add_f32 v{vrs}, 0x3727c5ac, v{vrs}")
        self.rnd(vrs, vrs)
        A(f"v_sqrt_f32 v{vrs}, v{vrs}")
        self.rnd(vrs, vrs)
        A(f"v_rcp_f32 v{vrs}, v{vrs}")

    def norm_pair(self, d, lo, hi, vmb, vrs):
        A = self.A
        A(f"v_sub_f32 v{lo}, v{lo}, v{vmb}")
        A(f"v_sub_f32 v{hi}, v{hi}, v{vmb}")
        self.rnd(lo, lo)
        self.rnd(hi, hi)
        A(f"v_mul_f32 v{lo}, v{lo}, v{vrs}")
        A(f"v_mul_f32 v{hi}, v{hi}, v{vrs}")
        A(f"v_cvt_pk_bf16_f32 v{d}, v{lo}, v{hi}")

    def perm_pairs(self, dst, r0, r1):
        for u in range(4):
            self.A(f"v_perm_b32 v{dst+2*u}, v{r1+u}, v{r0+u}, s{sLO}")
            self.A(f"v_perm_b32 v{dst+2*u+1}, v{r1+u}, v{r0+u}, s{sHI}")

    def poll_issue(self, loads):
        ids = []
        for t in loads:
            ids.append(self.load(t))
        return ids

    def poll_finish(self, loads, check, counted_id=None):
        A = self.A
        n = len(loads)
        if counted_id is None:
            self.waitall()
        else:
            self.wait(counted_id)
        ldone, lretry = self.lab("Lpd"), self.lab("Lpr")

        def orall():
            if n == 1:
                A(f"s_mov_b64 s[{sM}:{sM+1}], s[{sMISS}:{sMISS+1}]")
            else:
                A(f"s_or_b64 s[{sM}:{sM+1}], s[{sMISS}:{sMISS+1}], s[{sMISS+2}:{sMISS+3}]")
                for k in range(2, n):
                    A(f"s_or_b64 s[{sM}:{sM+1}], s[{sM}:{sM+1}], s[{sMISS+2*k}:{sMISS+2*k+1}]")
            A(f"s_cmp_eq_u64 s[{sM}:{sM+1}], 0")
        for k in range(n):
            check(k)
        orall()
        A(f"s_cbranch_scc1 {ldone}")
        A(f"s_mov_b32 s{sSPIN}, {SPIN_LIMIT}")
        A(f"{lretry}:")
        for k in range(n):
            sk = self.lab("Lps")
            A(f"s_cmp_eq_u64 s[{sMISS+2*k}:{sMISS+2*k+1}], 0")
            A(f"s_cbranch_scc1 {sk}")
            A(f"s_mov_b64 exec, s[{sMISS+2*k}:{sMISS+2*k+1}]")
            for t in (loads[k] if isinstance(loads[k], (list, tuple)) else [loads[k]]):
                A(t)
            A(f"{sk}:")
        A("s_mov_b64 exec, -1")
        A("s_waitcnt vmcnt(0)")
        for k in range(n):
            sk = self.lab("Lpc")
            A(f"s_cmp_eq_u64 s[{sMISS+2*k}:{sMISS+2*k+1}], 0")
            A(f"s_cbranch_scc1 {sk}")
            check(k)
            A(f"{sk}:")
        orall()
        A(f"s_cbranch_scc1 {ldone}")
        A(f"s_sub_u32 s{sSPIN}, s{sSPIN}, 1")
        A(f"s_cmp_lg_u32 s{sSPIN}, 0")
        A(f"s_cbranch_scc1 {lretry}")
        A(f"{ldone}:")

    def check_sentinel(self, base):
        def chk(k):
            r = base + 4 * k
            t = vE + (k & 1)
            self.A(f"v_max3_u32 v{t}, v{r}, v{r+1}, v{r+2}")
            self.A(f"v_max_u32 v{t}, v{t}, v{r+3}")
            self.A(f"v_cmp_eq_u32 s[{sMISS+2*k}:{sMISS+2*k+1}], -1, v{t}")
        return chk

    def slot(self, i):
        s = i % self.R
        if s < 32:
            return ("a", s * 4)
        if s < 64:
            return ("v", vRING + (s - 32) * 4)
        return ("a", 128 + (s - 64) * 4)

    def issue_stream(self, i):
        t, r = self.slot(i)
        isK = i < 128
        a = i % 128
        off = (a >> 4) * (32 * 65536) + (a & 15) * 4096
        self.A(f"s_add_u32 s{sT}, s{sBASE}, {off}")
        return self.load(f"buffer_load_dwordx4 {vr(r,4,t)}, v{vK if isK else vV}, {srd(sK if isK else sV)}, s{sT} offen{'' if ('K' if isK else 'V') in self.dbg else ' nt'}")

    def k_dpp(self, a):
        d = vAT + (a & 3) * 4
        z = vZ + 8 * (a >> 5) + (a & 7)
        t = (a >> 3) & 3
        first = True
        for dp in (1, 2, 3):
            p = (t + dp) & 3
            ror = (4 * (t - p)) % 16
            self.dpp("v_add_f32", z, d + p, (d + t) if first else z, f"row_ror:{ror}", bank=1 << t)
            first = False
        if (a & 31) == 31:
            G = a >> 5
            zs = [vZ + 8 * G + i for i in range(8)]
            for z in zs:
                self.rnd(z, z)
            for z in zs:
                self.A(f"v_mul_f32 v{z}, 0x3db504f3, v{z}")
            for z in zs:
                self.rnd(z, z)
            if G == 0:
                self.A(f"v_max_f32 v{vM}, v{zs[0]}, v{zs[1]}")
                rest = zs[2:]
            else:
                rest = zs
            for i in range(0, len(rest), 2):
                self.A(f"v_max3_f32 v{vM}, v{vM}, v{rest[i]}, v{rest[i+1]}")

    def consume_k(self, a):
        t, r = self.slot(a)
        d = vAT + (a & 3) * 4
        self.A(f"v_mfma_f32_16x16x32_bf16 {vr(d,4)}, {vr(r,4,t)}, {vr(vQ,4)}, 0")
        if a >= 3:
            self.k_dpp(a - 3)
        if a == 127:
            for b in (125, 126, 127):
                self.k_dpp(b)

    def consume_v_group(self, gam):
        A = self.A
        G, t0 = gam >> 2, gam & 3
        pb = vZ + 8 * G
        if t0 == 0:
            B = pb
        else:
            B = vBS + (gam & 1) * 4
            for u in range(4):
                A(f"v_mov_b32_dpp v{B+u}, v{pb+u} row_ror:{16-4*t0} row_mask:0xf bank_mask:0xf")
        slots = [self.slot(128 + gam * 8 + tau) for tau in range(8)]
        for uu in range(4):
            src = []
            for tau in range(8):
                t, r = slots[tau]
                if t == "a":
                    tmp = vRD + (uu & 1) * 8 + tau
                    A(f"v_accvgpr_read_b32 v{tmp}, a{r+uu}")
                    src.append(tmp)
                else:
                    src.append(r + uu)
            alo = vAT + (uu & 1) * 8
            ahi = alo + 4
            for u in range(4):
                A(f"v_perm_b32 v{alo+u}, v{src[2*u+1]}, v{src[2*u]}, s{sLO}")
            for u in range(4):
                A(f"v_perm_b32 v{ahi+u}, v{src[2*u+1]}, v{src[2*u]}, s{sHI}")
            for e, a_ in ((2 * uu, alo), (2 * uu + 1, ahi)):
                acc = vr(vACC + 4 * e, 4)
                A(f"v_mfma_f32_16x16x32_bf16 {acc}, {vr(a_,4)}, {vr(B,4)}, {'0' if gam == 0 else acc}")

    def prologue(self):
        A = self.A
        A("s_cmp_ge_u32 s2, 256")
        A("s_cbranch_scc1 L_end")
        A("s_load_dwordx16 s[4:19], s[0:1], 0")
        A("s_load_dwordx8 s[20:27], s[0:1], 64")
        if self.pace:
            A("s_memrealtime vcc")
        A(f"v_lshrrev_b32 v{vT0}, 6, v0")
        A(f"v_and_b32 v{vL}, 63, v0")
        A(f"v_readfirstlane_b32 s3, v{vT0}")
        if self.gmap == 0:
            A(f"s_and_b32 s{sG}, s2, 7")
            A(f"s_lshr_b32 s{sJ}, s2, 3")
        else:
            A(f"s_lshr_b32 s{sG}, s2, 5")
            A(f"s_and_b32 s{sJ}, s2, 31")
        A(f"v_lshlrev_b32 v{vV}, 4, v{vL}")
        A(f"v_bfe_u32 v{vK}, v{vL}, 2, 2")
        A(f"v_lshlrev_b32 v{vK}, 8, v{vK}")
        A(f"v_lshrrev_b32 v{vT0}, 4, v{vL}")
        A(f"v_lshl_add_u32 v{vK}, v{vT0}, 6, v{vK}")
        A(f"v_and_b32 v{vT0}, 3, v{vL}")
        A(f"v_lshl_add_u32 v{vK}, v{vT0}, 4, v{vK}")
        A(f"v_lshrrev_b32 v{vB}, 1, v{vL}")
        A(f"v_lshlrev_b32 v{vA}, 14, v{vB}")
        A(f"v_and_b32 v{vT0}, 1, v{vL}")
        A(f"v_lshl_add_u32 v{vA}, v{vT0}, 4, v{vA}")
        A(f"v_lshlrev_b32 v{vB}, 2, v{vB}")
        A(f"v_and_b32 v{vC}, 31, v{vL}")
        A(f"v_lshlrev_b32 v{vC}, 3, v{vC}")
        A(f"v_lshrrev_b32 v{vT0}, 5, v{vL}")
        A(f"v_lshl_add_u32 v{vC}, v{vT0}, 2, v{vC}")
        for i in range(4):
            A(f"v_mov_b32 v{vQ+i}, -1")
        if self.stamps:
            A(f"v_mov_b32 v{vST}, 0")
        A(f"s_mov_b32 s{sLO}, 0x05040100")
        A(f"s_mov_b32 s{sHI}, 0x07060302")
        A(f"s_lshl_b32 s{sBASE}, s{sJ}, 16")
        A(f"s_lshl_b32 s{sT}, s3, 10")
        A(f"s_add_u32 s{sBASE}, s{sBASE}, s{sT}")
        A(f"s_lshl_b32 s{sT1}, s{sG}, 24")
        A(f"s_lshl_b32 s{sU0}, s{sG}, 10")
        A(f"s_lshl_b32 s{sU1}, s{sJ}, 5")
        A(f"s_add_u32 s{sU0}, s{sU0}, s{sU1}")
        A(f"s_lshl_b32 s{sU1}, s3, 20")
        A(f"s_add_u32 s{sU0}, s{sU0}, s{sU1}")
        A(f"s_lshl_b32 s{sU1}, s3, 8")
        A("s_waitcnt lgkmcnt(0)")
        A(f"s_load_dword s{sE}, s[26:27], 0")
        if self.pace:
            A(f"s_mov_b32 s{sT0}, vcc_lo")

        def mk(s, p, n):
            A(f"s_mov_b32 s{s}, s{p}")
            A(f"s_mov_b32 s{s+1}, s{p+1}")
            A(f"s_mov_b32 s{s+2}, {n}")
            A(f"s_mov_b32 s{s+3}, 0x20000")
        mk(sX, 4, 1024)
        mk(sWQ, 10, 0 if 'q' in self.dbg else 512 * 8192)
        zx = vZ
        self.id_x = self.load(f"buffer_load_dwordx4 {vr(zx,4)}, v{vV}, {srd(sX)}, 0 offen")
        self.load(f"buffer_load_dword v{zx+4}, v{vB}, {srd(sX)}, s{sU1} offen")
        self.id_xp = self.load(f"buffer_load_dword v{zx+5}, v{vB}, {srd(sX)}, s{sU1} offen offset:128")
        for i in range(4):
            off = (i & 1) * 8192 + (i >> 1) * 64 * 8192
            A(f"s_add_u32 s{sT}, s{sU0}, {off}")
            self.id_wq = self.load(f"buffer_load_dwordx4 {vr(zx+8+4*i,4)}, v{vA}, {srd(sWQ)}, s{sT} offen")
        A(f"s_add_u32 s{sK}, s6, s{sT1}")
        A(f"s_addc_u32 s{sK+1}, s7, 0")
        A(f"s_mov_b32 s{sK+2}, {16<<20}")
        A(f"s_mov_b32 s{sK+3}, 0x20000")
        A(f"s_add_u32 s{sV}, s8, s{sT1}")
        A(f"s_addc_u32 s{sV+1}, s9, 0")
        A(f"s_mov_b32 s{sV+2}, {16<<20}")
        A(f"s_mov_b32 s{sV+3}, 0x20000")
        mk(sWS, 26, WS_SIZE)
        self.mk = mk

    def prologue2(self):
        A = self.A
        mk = self.mk
        self.load(f"buffer_load_dword v{vX3}, v{vC}, {srd(sX)}, s{sU1} offen")
        A(f"s_lshl_b32 s{sU0}, s{sG}, 16")
        A(f"s_lshl_b32 s{sU1}, s{sJ}, 11")
        A(f"s_add_u32 s{sU0}, s{sU0}, s{sU1}")
        A(f"s_add_u32 s{sU0}, s{sU0}, {WS_O1}")
        A(f"s_lshl_b32 s{sU1}, s2, 11")
        A(f"s_add_u32 s{sU1}, s{sU1}, {WS_A3 - 2048}")
        A("s_cmp_lt_u32 s3, 2")
        A(f"s_cselect_b32 s{sU0}, s{sU0}, s{sU1}")
        A(f"s_lshl_b32 s{sU1}, s3, 10")
        A(f"s_add_u32 s{sU0}, s{sU0}, s{sU1}")
        A(f"buffer_store_dwordx4 {vr(vQ,4)}, v{vV}, {srd(sWS)}, s{sU0} offen sc1")
        A(f"s_lshl_b32 s{sP}, s{sG}, 12")
        A(f"s_lshr_b32 s{sU1}, s{sJ}, 4")
        A(f"s_lshl_b32 s{sU1}, s{sU1}, 11")
        A(f"s_add_u32 s{sP}, s{sP}, s{sU1}")
        A(f"s_and_b32 s{sU1}, s{sJ}, 15")
        A(f"s_lshl_b32 s{sU1}, s{sU1}, 7")
        A(f"s_add_u32 s{sP}, s{sP}, s{sU1}")
        A(f"s_add_u32 s{sP}, s{sP}, {WS_A2}")
        A("s_mov_b64 exec, 0xff")
        A(f"buffer_store_dwordx4 {vr(vQ,4)}, v{vV}, {srd(sWS)}, s{sP} offen sc1")
        A("s_mov_b64 exec, -1")
        mk(sWO, 12, 0 if 'o' in self.dbg else 4096 * 1024)
        A("s_lshr_b32 s5, s2, 5")
        A("s_lshl_b32 s5, s5, 3")
        A("s_and_b32 s4, s2, 7")
        A("s_add_u32 s4, s4, s5")
        A("s_lshl_b32 s4, s4, 2")
        A("s_bfe_u32 s5, s2, 0x20003")
        A("s_add_u32 s4, s4, s5")
        A("s_cmp_lt_u32 s4, 112")
        A("s_cselect_b32 s5, 1, 0")
        mk(sWG, 16, 0)
        mk(sWU, 18, 0)
        mk(sWD, 20, 0)
        if 'g' not in self.dbg:
            A(f"s_cselect_b32 s{sWG+2}, {512*3584}, 0")
            A(f"s_cselect_b32 s{sWU+2}, {512*3584}, 0")
        if 'd' not in self.dbg:
            A(f"s_cselect_b32 s{sWD+2}, {1792*1024}, 0")
        mk(sOUT, 22, 1024)

    def qphase(self):
        A = self.A
        zx = vZ
        t = vACC
        self.wait(self.id_xp)
        for u in range(4):
            A(f"v_lshlrev_b32 v{t+2*u}, 16, v{zx+u}")
            A(f"v_and_b32 v{t+2*u+1}, 0xffff0000, v{zx+u}")
        s = t + 8
        A(f"v_add_f32 v{s}, v{t}, v{t+1}")
        for i in range(2, 8):
            A(f"v_add_f32 v{s}, v{s}, v{t+i}")
        self.wave_sum_to_sgpr([s], [sU0])
        mean, var, mb, rs = t + 9, t + 10, t + 11, t + 12
        A(f"v_mov_b32 v{mean}, 0x3b000000")
        A(f"v_mul_f32 v{mean}, s{sU0}, v{mean}")
        for i in range(8):
            A(f"v_sub_f32 v{t+i}, v{t+i}, v{mean}")
        A(f"v_mul_f32 v{s}, v{t}, v{t}")
        for i in range(1, 8):
            A(f"v_fmac_f32 v{s}, v{t+i}, v{t+i}")
        self.wave_sum_to_sgpr([s], [sU0])
        A(f"v_mov_b32 v{var}, 0x3b000000")
        A(f"v_mul_f32 v{var}, s{sU0}, v{var}")
        self.ln_scalars(mean, var, mb, rs)
        xn = t + 14
        for i in range(2):
            A(f"v_lshlrev_b32 v{t+2*i}, 16, v{zx+4+i}")
            A(f"v_and_b32 v{t+2*i+1}, 0xffff0000, v{zx+4+i}")
            self.norm_pair(xn + i, t + 2 * i, t + 2 * i + 1, mb, rs)
        self.wait(self.id_wq)
        w = zx + 8
        p0, p1 = vAT, vAT + 8
        self.perm_pairs(p0, w, w + 4)
        self.perm_pairs(p1, w + 8, w + 12)
        acc = t + 16
        for c in range(8):
            A(f"v_dot2_f32_bf16 v{acc+c}, v{p0+c}, v{xn}, 0")
        for c in range(8):
            A(f"v_dot2_f32_bf16 v{acc+c}, v{p1+c}, v{xn+1}, v{acc+c}")
        self.tswap(32, [(acc + c, acc + c + 4) for c in range(4)])
        self.tswap(16, [(acc + c, acc + c + 2) for c in range(2)])
        for c in ("row_ror:4", "row_ror:8", "quad_perm:[2,3,0,1]"):
            for r in (acc, acc + 1):
                self.dpp("v_add_f32", r, r, r, c)
        ad = t
        A(f"v_and_b32 v{ad}, 1, v{vL}")
        A(f"v_lshlrev_b32 v{ad}, 5, v{ad}")
        A(f"v_lshrrev_b32 v{t+1}, 4, v{vL}")
        A(f"v_lshl_add_u32 v{ad}, v{t+1}, 3, v{ad}")
        A(f"s_lshl_b32 s{sU0}, s3, 6")
        A(f"v_add_u32 v{ad}, s{sU0}, v{ad}")
        A(f"v_mov_b32 v{t+2}, 0")
        A(f"s_mov_b32 exec_lo, 0x00030003")
        A(f"s_mov_b32 exec_hi, 0x00030003")
        A(f"ds_write_b64 v{ad}, {vr(acc,2)} offset:{L_QP}")
        A(f"ds_write_b32 v{t+2}, v{t+2} offset:{L_CNT}")
        A("s_mov_b64 exec, -1")
        A("s_waitcnt lgkmcnt(0)")
        A(f"s_add_u32 s{sE}, s{sE}, 1")
        A(f"s_and_b32 s{sTAG}, s{sE}, 0xff")
        A(f"s_mul_i32 s{sTAG}, s{sTAG}, 0x01010101")
        A(f"s_xor_b32 s{sTAG}, s{sTAG}, 0x33aa5500")
        A(f"s_and_b32 s{sT16}, s{sTAG}, 0xffff")
        A(f"s_mul_i32 s{sT2}, s{sT16}, 0x10001")
        A("s_barrier")
        skip = self.lab("Lq")
        A("s_cmp_lg_u32 s3, 0")
        A(f"s_cbranch_scc1 {skip}")
        A("s_mov_b64 exec, 0xf")
        for wv in range(4):
            A(f"ds_read_b128 {vr(t+4*wv,4)}, v{vV} offset:{L_QP+64*wv}")
        A(f"s_lshl_b32 s{sU0}, s{sG}, 11")
        A(f"s_lshl_b32 s{sU1}, s{sJ}, 6")
        A(f"s_add_u32 s{sU0}, s{sU0}, s{sU1}")
        A(f"s_add_u32 s{sU0}, s{sU0}, {WS_QB}")
        A("s_waitcnt lgkmcnt(0)")
        for i in range(4):
            A(f"v_add_f32 v{t+i}, v{t+i}, v{t+4+i}")
            A(f"v_add_f32 v{t+8+i}, v{t+8+i}, v{t+12+i}")
        for i in range(4):
            A(f"v_add_f32 v{t+i}, v{t+i}, v{t+8+i}")
        for i in range(4):
            self.rnd(t + i, t + i)
        for i in range(4):
            A(f"v_or_b32 v{t+i}, s{sT16}, v{t+i}")
        A(f"buffer_store_dwordx4 {vr(t,4)}, v{vV}, {srd(sWS)}, s{sU0} offen sc1")
        A("s_mov_b64 exec, -1")
        A(f"{skip}:")
        self.stamp("qpub")

    def qpoll_issue(self):
        A = self.A
        ad = vE + 2
        A(f"v_and_b32 v{ad}, 3, v{vL}")
        A(f"v_lshlrev_b32 v{ad}, 9, v{ad}")
        A(f"v_lshrrev_b32 v{vT0}, 2, v{vL}")
        A(f"v_lshl_add_u32 v{ad}, v{vT0}, 5, v{ad}")
        A(f"s_lshl_b32 s{sU2}, s{sG}, 11")
        A(f"s_add_u32 s{sU2}, s{sU2}, {WS_QB}")
        b = vACC
        self.q_loads = [[f"buffer_load_dwordx4 {vr(b,4)}, v{ad}, {srd(sWS)}, s{sU2} offen sc1",
                         f"buffer_load_dwordx4 {vr(b+4,4)}, v{ad}, {srd(sWS)}, s{sU2} offen offset:16 sc1"]]
        self.load(self.q_loads[0][0])
        self.id_q = self.load(self.q_loads[0][1])

    def qpoll_finish(self):
        A = self.A
        b = vACC
        t = vACC + 8

        def chk(k):
            for u in range(4):
                A(f"v_perm_b32 v{t+u}, v{b+2*u+1}, v{b+2*u}, s{sLO}")
            for u in range(4):
                A(f"v_xor_b32 v{t+u}, s{sT2}, v{t+u}")
            A(f"v_or3_b32 v{t}, v{t}, v{t+1}, v{t+2}")
            A(f"v_or_b32 v{t}, v{t}, v{t+3}")
            A(f"v_cmp_ne_u32 s[{sMISS}:{sMISS+1}], 0, v{t}")
        self.stamp("qchk")
        self.poll_finish(self.q_loads, chk, self.id_q)
        for u in range(4):
            A(f"v_perm_b32 v{vQ+u}, v{b+2*u+1}, v{b+2*u}, s{sHI}")
        self.stamp("qok")

    def expd(self, d, a, b):
        self.A(f"v_sub_f32 v{d}, v{a}, v{b}")
        self.A(f"v_mul_f32 v{d}, {LOG2E:#x}, v{d}")
        self.A(f"v_exp_f32 v{d}, v{d}")

    def stats_publish(self):
        A = self.A
        self.stamp("kdone")
        for z in range(32):
            A(f"v_sub_f32 v{vZ+z}, v{vZ+z}, v{vM}")
        for z in range(32):
            A(f"v_mul_f32 v{vZ+z}, {LOG2E:#x}, v{vZ+z}")
        for z in range(32):
            A(f"v_exp_f32 v{vZ+z}, v{vZ+z}")
        t = vAT
        for i in range(4):
            A(f"v_add_f32 v{t+i}, v{vZ+i}, v{vZ+4+i}")
        for z in range(8, 32):
            A(f"v_add_f32 v{t+(z&3)}, v{t+(z&3)}, v{vZ+z}")
        A(f"v_add_f32 v{t}, v{t}, v{t+1}")
        A(f"v_add_f32 v{t+2}, v{t+2}, v{t+3}")
        A(f"v_add_f32 v{vLs}, v{t}, v{t+2}")
        mw, lw, tt = t + 4, t + 5, t + 6
        A(f"v_mov_b32 v{mw}, v{vM}")
        self.allreduce_25("v_max_f32", mw, tt)
        self.expd(lw, vM, mw)
        A(f"v_mul_f32 v{lw}, v{lw}, v{vLs}")
        self.allreduce_25("v_add_f32", lw, tt)
        ad = t + 7
        A(f"v_lshlrev_b32 v{ad}, 3, v{vL}")
        A(f"s_lshl_b32 s{sU0}, s3, 5")
        A(f"v_add_u32 v{tt}, s{sU0}, v{ad}")
        A(f"v_mov_b32 v{t+8}, 0")
        A(f"v_mov_b32 v{t+9}, 1")
        A("s_mov_b64 exec, 0xf")
        A(f"ds_write_b64 v{tt}, {vr(mw,2)} offset:{L_STW}")
        A("s_mov_b64 exec, 1")
        A(f"ds_add_rtn_u32 v{t+10}, v{t+8}, v{t+9} offset:{L_CNT}")
        A("s_mov_b64 exec, -1")
        A(f"v_and_b32 v{ad}, 0x78, v{ad}")
        A("s_waitcnt lgkmcnt(0)")
        A(f"v_readfirstlane_b32 s{sU0}, v{t+10}")
        skip = self.lab("Ls")
        A(f"s_cmp_lg_u32 s{sU0}, 3")
        A(f"s_cbranch_scc1 {skip}")
        m, l = t + 8, t + 9
        A(f"ds_read_b64 {vr(m,2)}, v{ad} offset:{L_STW}")
        A(f"s_lshl_b32 s{sU0}, s{sG}, 11")
        A(f"s_lshl_b32 s{sU1}, s{sJ}, 6")
        A(f"s_add_u32 s{sU0}, s{sU0}, s{sU1}")
        A(f"s_add_u32 s{sU0}, s{sU0}, {WS_ST}")
        A(f"s_lshl_b32 s{sU1}, s2, 2")
        A(f"s_add_u32 s{sU1}, s{sU1}, {WS_FL}")
        A("s_waitcnt lgkmcnt(0)")
        o = t + 12
        A(f"v_mov_b32 v{o}, v{m}")
        self.dpp("v_max_f32", o, o, o, "row_ror:4")
        self.dpp("v_max_f32", o, o, o, "row_ror:8")
        self.expd(tt, m, o)
        A(f"v_mul_f32 v{l}, v{l}, v{tt}")
        self.dpp("v_add_f32", l, l, l, "row_ror:4")
        self.dpp("v_add_f32", l, l, l, "row_ror:8")
        A(f"v_or_b32 v{o}, s{sT16}, v{o}")
        A(f"v_and_b32 v{o+1}, 0xffff0000, v{l}")
        A(f"v_or_b32 v{o+1}, s{sT16}, v{o+1}")
        A(f"v_lshlrev_b32 v{o+2}, 16, v{l}")
        A(f"v_or_b32 v{o+2}, s{sT16}, v{o+2}")
        A(f"v_mov_b32 v{o+3}, s{sTAG}")
        A("s_mov_b64 exec, 0xf")
        A(f"buffer_store_dwordx4 {vr(o,4)}, v{vV}, {srd(sWS)}, s{sU0} offen sc1")
        A("s_mov_b64 exec, 1")
        A(f"buffer_store_dword v{o+3}, v{vV}, {srd(sWS)}, s{sU1} offen sc1")
        A("s_mov_b64 exec, -1")
        A(f"{skip}:")
        self.stamp("spub")

    def spoll_issue(self):
        A = self.A
        A(f"s_lshl_b32 s{sU2}, s{sG}, 11")
        A(f"s_add_u32 s{sU2}, s{sU2}, {WS_ST}")
        b = vACC
        self.s_loads = [[f"buffer_load_dwordx4 {vr(b,4)}, v{vV}, {srd(sWS)}, s{sU2} offen sc1",
                         f"buffer_load_dwordx4 {vr(b+4,4)}, v{vV}, {srd(sWS)}, s{sU2} offen offset:1024 sc1"]]
        self.load(self.s_loads[0][0])
        self.id_s = self.load(self.s_loads[0][1])

    def spoll_finish(self):
        A = self.A
        b = vACC
        t = vACC + 8

        def chk(k):
            A(f"v_perm_b32 v{t}, v{b+1}, v{b}, s{sLO}")
            A(f"v_perm_b32 v{t+1}, v{b+5}, v{b+4}, s{sLO}")
            A(f"v_perm_b32 v{t+2}, v{b+6}, v{b+2}, s{sLO}")
            for u in range(3):
                A(f"v_xor_b32 v{t+u}, s{sT2}, v{t+u}")
            A(f"v_or3_b32 v{t}, v{t}, v{t+1}, v{t+2}")
            A(f"v_cmp_ne_u32 s[{sMISS}:{sMISS+1}], 0, v{t}")
        self.stamp("schk")
        self.poll_finish(self.s_loads, chk, self.id_s)
        ma, mb, la, lb, M, tt, f = t, t + 1, t + 2, t + 3, t + 4, t + 5, t + 6
        A(f"v_and_b32 v{ma}, 0xffff0000, v{b}")
        A(f"v_and_b32 v{mb}, 0xffff0000, v{b+4}")
        A(f"v_perm_b32 v{la}, v{b+1}, v{b+2}, s{sHI}")
        A(f"v_perm_b32 v{lb}, v{b+5}, v{b+6}, s{sHI}")
        A(f"v_max_f32 v{M}, v{ma}, v{mb}")
        self.allreduce_25("v_max_f32", M, tt)
        self.expd(ma, ma, M)
        self.expd(mb, mb, M)
        A(f"v_mul_f32 v{la}, v{la}, v{ma}")
        A(f"v_fmac_f32 v{la}, v{lb}, v{mb}")
        self.allreduce_25("v_add_f32", la, tt)
        A(f"v_rcp_f32 v{lb}, v{la}")
        self.expd(f, vM, M)
        A(f"v_fma_f32 v{tt}, -v{la}, v{lb}, 1.0")
        A(f"v_fmac_f32 v{lb}, v{tt}, v{lb}")
        A(f"v_mul_f32 v{f}, v{f}, v{lb}")
        for z in range(32):
            A(f"v_mul_f32 v{vZ+z}, v{vZ+z}, v{f}")
        for G in range(4):
            for u in range(4):
                A(f"v_cvt_pk_bf16_f32 v{vZ+8*G+u}, v{vZ+8*G+2*u}, v{vZ+8*G+2*u+1}")
        self.stamp("sok")

    def weights_prep_addr(self):
        A = self.A
        A(f"v_bfe_u32 v{vA}, v{vL}, 3, 1")
        A(f"v_lshlrev_b32 v{vA}, 15, v{vA}")
        A(f"v_and_b32 v{vT0}, 7, v{vL}")
        A(f"v_lshl_add_u32 v{vA}, v{vT0}, 10, v{vA}")
        A(f"v_lshrrev_b32 v{vT0}, 4, v{vL}")
        A(f"v_lshl_add_u32 v{vA}, v{vT0}, 4, v{vA}")
        A(f"v_lshrrev_b32 v{vB}, 1, v{vL}")
        A(f"v_mul_u32_u24 v{vB}, {4*3584}, v{vB}")
        A(f"v_and_b32 v{vC}, 1, v{vL}")
        A(f"v_lshl_add_u32 v{vB}, v{vC}, 4, v{vB}")
        A(f"v_lshlrev_b32 v{vC}, 12, v{vT0}")
        A(f"v_and_b32 v{vT0}, 15, v{vL}")
        A(f"v_lshl_add_u32 v{vC}, v{vT0}, 4, v{vC}")
        A(f"s_lshl_b32 s6, s{sG}, 19")
        A(f"s_lshr_b32 s7, s{sJ}, 4")
        A("s_lshl_b32 s7, s7, 18")
        A("s_add_u32 s6, s6, s7")
        A("s_lshl_b32 s7, s3, 16")
        A("s_add_u32 s6, s6, s7")
        A(f"s_and_b32 s7, s{sJ}, 15")
        A("s_lshl_b32 s7, s7, 6")
        A("s_add_u32 s6, s6, s7")
        A(f"s_mul_i32 s7, s3, {128*3584}")
        A("s_lshl_b32 s8, s4, 5")
        A("s_add_u32 s7, s7, s8")
        A("s_lshl_b32 s8, s4, 14")
        A("s_lshl_b32 s9, s3, 8")
        A("s_add_u32 s8, s8, s9")

    def issue_weight(self, k):
        A = self.A
        grp, i = k >> 2, k & 3
        if grp == 0:
            A(f"s_add_u32 s{sT}, s6, {i*8192}")
            self.id_wo = self.load(f"buffer_load_dwordx4 {vr(vZ+8*i+4,4)}, v{vA}, {srd(sWO)}, s{sT} offen{'' if 'w' in self.dbg else ' nt'}")
        elif grp in (1, 2):
            A(f"s_add_u32 s{sT}, s7, {i*3584}")
            self.load(f"buffer_load_dwordx4 {vr(128+(k-4)*4,4,'a')}, v{vB}, {srd(sWG if grp == 1 else sWU)}, s{sT} offen")
        else:
            self.load(f"buffer_load_dwordx4 {vr(128+(k-4)*4,4,'a')}, v{vC}, {srd(sWD)}, s8 offen offset:{i*1024} nt")

    def tail(self):
        A = self.A
        self.stamp("vdone")
        t = vAT
        ad = vE + 2
        A(f"v_and_b32 v{ad}, 3, v{vL}")
        A(f"v_lshrrev_b32 v{vT0}, 4, v{vL}")
        A(f"v_lshl_add_u32 v{ad}, v{ad}, 2, v{vT0}")
        A(f"v_mul_u32_u24 v{ad}, 144, v{ad}")
        A(f"s_mul_i32 s{sU0}, s3, 2304")
        A(f"v_add_u32 v{ad}, s{sU0}, v{ad}")
        rd = vE + 3
        A(f"s_and_b32 s{sU1}, s3, 1")
        A(f"s_mul_i32 s{sU0}, s{sU1}, {8*144}")
        A(f"v_lshrrev_b32 v{rd}, 3, v{vL}")
        A(f"v_mul_u32_u24 v{rd}, 144, v{rd}")
        A(f"v_and_b32 v{vT0}, 7, v{vL}")
        A(f"v_lshl_add_u32 v{rd}, v{vT0}, 4, v{rd}")
        A(f"v_add_u32 v{rd}, s{sU0}, v{rd}")
        A("s_mov_b32 exec_lo, 0x000f000f")
        A("s_mov_b32 exec_hi, 0x000f000f")
        for e in range(8):
            A(f"ds_write_b128 v{ad}, {vr(vACC+4*e,4)} offset:{L_OP+16*e}")
        A("s_mov_b64 exec, -1")
        A(f"s_lshl_b32 s{sU0}, s{sG}, 16")
        A(f"s_add_u32 s{sU2}, s{sU0}, {WS_O1}")
        A(f"s_lshl_b32 s{sU0}, s{sJ}, 11")
        A(f"s_add_u32 s{sU0}, s{sU0}, s{sU2}")
        A(f"s_lshl_b32 s{sU1}, s{sU1}, 10")
        A(f"s_add_u32 s{sU0}, s{sU0}, s{sU1}")
        A("s_waitcnt lgkmcnt(0)")
        A("s_barrier")
        skip = self.lab("Lo")
        A("s_cmp_gt_u32 s3, 1")
        A(f"s_cbranch_scc1 {skip}")
        for wv in range(4):
            A(f"ds_read_b128 {vr(t+4*wv,4)}, v{rd} offset:{L_OP+2304*wv}")
        A("s_waitcnt lgkmcnt(2)")
        A(f"v_pk_add_f32 {vr(t,2)}, {vr(t,2)}, {vr(t+4,2)}")
        A(f"v_pk_add_f32 {vr(t+2,2)}, {vr(t+2,2)}, {vr(t+6,2)}")
        A("s_waitcnt lgkmcnt(0)")
        A(f"v_pk_add_f32 {vr(t+8,2)}, {vr(t+8,2)}, {vr(t+12,2)}")
        A(f"v_pk_add_f32 {vr(t+10,2)}, {vr(t+10,2)}, {vr(t+14,2)}")
        A(f"v_pk_add_f32 {vr(t,2)}, {vr(t,2)}, {vr(t+8,2)}")
        A(f"v_pk_add_f32 {vr(t+2,2)}, {vr(t+2,2)}, {vr(t+10,2)}")
        A(f"buffer_store_dwordx4 {vr(t,4)}, v{vV}, {srd(sWS)}, s{sU0} offen sc1")
        A(f"{skip}:")
        self.stamp("opub")
        pa = vE + 2
        A(f"v_lshrrev_b32 v{pa}, 4, v{vL}")
        A(f"v_lshlrev_b32 v{pa}, 11, v{pa}")
        A(f"v_and_b32 v{vT0}, 15, v{vL}")
        A(f"v_lshl_add_u32 v{pa}, v{vT0}, 4, v{pa}")
        A(f"s_lshr_b32 s{sU0}, s{sJ}, 4")
        A(f"s_lshl_b32 s{sU0}, s{sU0}, 10")
        A(f"s_add_u32 s{sU2}, s{sU2}, s{sU0}")
        A(f"s_lshl_b32 s{sU0}, s3, 8")
        A(f"s_add_u32 s{sU2}, s{sU2}, s{sU0}")
        for k in range(8):
            A(f"s_add_u32 s{10+k}, s{sU2}, {k*8192}")
        pb = vRING
        loads = [f"buffer_load_dwordx4 {vr(pb+4*k,4)}, v{pa}, {srd(sWS)}, s{10+k} offen sc1" for k in range(8)]
        self.poll_issue(loads)
        self.wait(self.id_wo)
        w2 = vACC
        self.perm_pairs(w2, vZ + 4, vZ + 12)
        self.perm_pairs(w2 + 8, vZ + 20, vZ + 28)
        self.poll_finish(loads, self.check_sentinel(pb))
        self.stamp("hop1")
        for step in (4, 2, 1):
            for k in range(step):
                for h in (0, 2):
                    A(f"v_pk_add_f32 {vr(pb+4*k+h,2)}, {vr(pb+4*k+h,2)}, {vr(pb+4*(k+step)+h,2)}")
        self.tswap(32, [(pb, pb + 2), (pb + 1, pb + 3)])
        A(f"v_mov_b32 v{pb+2}, v{pb}")
        A(f"v_mov_b32 v{pb+3}, v{pb+1}")
        self.tswap(16, [(pb, pb + 2), (pb + 1, pb + 3)])
        A(f"v_cvt_pk_bf16_f32 v{pb}, v{pb}, v{pb+1}")
        A(f"v_mov_b32 v{pb+1}, v{pb}")
        A(f"v_permlane32_swap_b32 v{pb}, v{pb+1}")
        acc = pb + 4
        for c in range(8):
            A(f"v_dot2_f32_bf16 v{acc+c}, v{w2+c}, v{pb}, 0")
        for c in range(8):
            A(f"v_dot2_f32_bf16 v{acc+c}, v{w2+8+c}, v{pb+1}, v{acc+c}")
        r1 = acc + 8
        for c in range(4):
            self.dpp("v_add_f32", r1 + c, acc + c, acc + c, "row_ror:8", bank=0x3)
            self.dpp("v_add_f32", r1 + c, acc + c + 4, acc + c + 4, "row_ror:8", bank=0xc)
        r2 = r1 + 4
        for c in range(2):
            self.dpp("v_add_f32", r2 + c, r1 + c, r1 + c, "row_ror:12", bank=0x5)
            self.dpp("v_add_f32", r2 + c, r1 + c + 2, r1 + c + 2, "row_ror:4", bank=0xa)
        for q in ("quad_perm:[1,0,3,2]", "quad_perm:[2,3,0,1]"):
            for c in range(2):
                self.dpp("v_add_f32", r2 + c, r2 + c, r2 + c, q)
        A(f"v_lshlrev_b32 v{vT0}, 1, v{vL}")
        A(f"s_lshl_b32 s{sU0}, s3, 7")
        A(f"v_add_u32 v{vT0}, s{sU0}, v{vT0}")
        A("s_mov_b32 exec_lo, 0x11111111")
        A("s_mov_b32 exec_hi, 0x11111111")
        A(f"ds_write_b64 v{vT0}, {vr(r2,2)} offset:{L_S2}")
        A("s_mov_b64 exec, -1")
        A("s_waitcnt lgkmcnt(0)")
        A("s_barrier")
        skip = self.lab("La")
        A("s_cmp_lg_u32 s3, 0")
        A(f"s_cbranch_scc1 {skip}")
        A("s_mov_b64 exec, 0xff")
        for wv in range(4):
            A(f"ds_read_b128 {vr(t+4*wv,4)}, v{vV} offset:{L_S2+128*wv}")
        A("s_waitcnt lgkmcnt(2)")
        A(f"v_pk_add_f32 {vr(t,2)}, {vr(t,2)}, {vr(t+4,2)}")
        A(f"v_pk_add_f32 {vr(t+2,2)}, {vr(t+2,2)}, {vr(t+6,2)}")
        A("s_waitcnt lgkmcnt(0)")
        A(f"v_pk_add_f32 {vr(t+8,2)}, {vr(t+8,2)}, {vr(t+12,2)}")
        A(f"v_pk_add_f32 {vr(t+10,2)}, {vr(t+10,2)}, {vr(t+14,2)}")
        A(f"v_pk_add_f32 {vr(t,2)}, {vr(t,2)}, {vr(t+8,2)}")
        A(f"v_pk_add_f32 {vr(t+2,2)}, {vr(t+2,2)}, {vr(t+10,2)}")
        A(f"buffer_store_dwordx4 {vr(t,4)}, v{vV}, {srd(sWS)}, s{sP} offen sc1")
        A("s_mov_b64 exec, -1")
        A(f"{skip}:")
        self.stamp("apub")
        A("s_cmp_eq_u32 s5, 0")
        A("s_cbranch_scc1 L_fin")
        fb = vRING + 64
        A(f"s_mov_b32 s{sU2}, {WS_FL}")
        fl = [f"buffer_load_dwordx4 {vr(fb,4)}, v{vV}, {srd(sWS)}, s{sU2} offen sc1"]
        self.poll_issue(fl)
        vW = vRING + 72
        for m in range(3):
            for i in range(16):
                A(f"v_accvgpr_read_b32 v{vRD+i}, a{128+16*m+i}")
            self.perm_pairs(vW + 16 * m, vRD, vRD + 4)
            self.perm_pairs(vW + 16 * m + 8, vRD + 8, vRD + 12)

        def chkf(k):
            for u in range(4):
                A(f"v_xor_b32 v{vE+4+u}, s{sTAG}, v{fb+u}")
            A(f"v_or3_b32 v{vE+4}, v{vE+4}, v{vE+5}, v{vE+6}")
            A(f"v_or_b32 v{vE+4}, v{vE+4}, v{vE+7}")
            A(f"v_cmp_ne_u32 s[{sMISS}:{sMISS+1}], 0, v{vE+4}")
        self.poll_finish(fl, chkf)
        A(f"v_lshrrev_b32 v{pa}, 5, v{vL}")
        A(f"v_lshlrev_b32 v{pa}, 11, v{pa}")
        A(f"v_and_b32 v{vT0}, 31, v{vL}")
        A(f"v_lshl_add_u32 v{pa}, v{vT0}, 4, v{pa}")
        A(f"s_lshl_b32 s{sU0}, s3, 9")
        for k in range(8):
            A(f"s_add_u32 s{10+k}, s{sU0}, {WS_A2 + k*4096}")
        self.poll_issue(loads)
        x0, x1, hadr, radr, gadr = vE + 4, vE + 5, vE + 6, vE + 7, vE + 3
        A(f"v_lshlrev_b32 v{x0}, 16, v{vX3}")
        A(f"v_and_b32 v{x1}, 0xffff0000, v{vX3}")
        A(f"v_lshlrev_b32 v{hadr}, 3, v{vT0}")
        A(f"v_lshrrev_b32 v{vT0}, 5, v{vL}")
        A(f"v_lshl_add_u32 v{hadr}, v{vT0}, 2, v{hadr}")
        A(f"s_lshl_b32 s{sU0}, s3, 8")
        A(f"v_add_u32 v{hadr}, s{sU0}, v{hadr}")
        A(f"v_lshrrev_b32 v{radr}, 1, v{vL}")
        A(f"v_lshlrev_b32 v{radr}, 3, v{radr}")
        A(f"v_add_u32 v{radr}, s{sU0}, v{radr}")
        A(f"v_lshrrev_b32 v{gadr}, 5, v{vL}")
        A(f"v_lshlrev_b32 v{gadr}, 8, v{gadr}")
        A(f"v_and_b32 v{vT0}, 1, v{vL}")
        A(f"v_lshl_add_u32 v{gadr}, v{vT0}, 7, v{gadr}")
        A(f"v_bfe_u32 v{vT0}, v{vL}, 4, 1")
        A(f"v_lshl_add_u32 v{gadr}, v{vT0}, 6, v{gadr}")
        A(f"s_lshl_b32 s{sU0}, s3, 2")
        A(f"v_add_u32 v{gadr}, s{sU0}, v{gadr}")
        self.poll_finish(loads, self.check_sentinel(pb))
        self.stamp("hop2")
        for step in (4, 2, 1):
            for k in range(step):
                for h in (0, 2):
                    A(f"v_pk_add_f32 {vr(pb+4*k+h,2)}, {vr(pb+4*k+h,2)}, {vr(pb+4*(k+step)+h,2)}")
        self.tswap(32, [(pb, pb + 2), (pb + 1, pb + 3)])
        h0, h1, s1, s2, hp = pb, pb + 1, pb + 4, pb + 5, pb + 6
        self.rnd(h0, h0)
        self.rnd(h1, h1)
        A(f"v_add_f32 v{h0}, v{h0}, v{x0}")
        A(f"v_add_f32 v{h1}, v{h1}, v{x1}")
        A(f"v_cvt_pk_bf16_f32 v{hp}, v{h0}, v{h1}")
        A(f"v_lshlrev_b32 v{h0}, 16, v{hp}")
        A(f"v_and_b32 v{h1}, 0xffff0000, v{hp}")
        A(f"ds_write_b32 v{hadr}, v{hp} offset:{L_H}")
        A(f"v_add_f32 v{s1}, v{h0}, v{h1}")
        A(f"v_mul_f32 v{s2}, v{h0}, v{h0}")
        A(f"v_fmac_f32 v{s2}, v{h1}, v{h1}")
        for c in ("row_ror:8", "row_ror:4", "row_ror:2", "row_ror:1"):
            for r in (s1, s2):
                self.dpp("v_add_f32", r, r, r, c)
        for r in (s1, s2):
            self.dpp("v_add_f32", r, r, r, "row_bcast:15", row=0xa)
        for r in (s1, s2):
            self.dpp("v_add_f32", r, r, r, "row_bcast:31", row=0xc)
        A(f"s_lshl_b32 s{sU0}, s3, 3")
        A(f"v_mov_b32 v{vT0}, s{sU0}")
        A(f"v_mov_b32 v{pb+7}, 0")
        A("s_mov_b32 exec_lo, 0")
        A("s_mov_b32 exec_hi, 0x80000000")
        A(f"ds_write_b64 v{vT0}, {vr(s1,2)} offset:{L_LNS}")
        A("s_mov_b64 exec, -1")
        A("s_waitcnt lgkmcnt(0)")
        A("s_barrier")
        q = pb + 8
        A(f"ds_read_b128 {vr(q,4)}, v{pb+7} offset:{L_LNS}")
        A(f"ds_read_b128 {vr(q+4,4)}, v{pb+7} offset:{L_LNS+16}")
        A("s_waitcnt lgkmcnt(0)")
        A(f"v_pk_add_f32 {vr(q,2)}, {vr(q,2)}, {vr(q+2,2)}")
        A(f"v_pk_add_f32 {vr(q+4,2)}, {vr(q+4,2)}, {vr(q+6,2)}")
        A(f"v_pk_add_f32 {vr(q,2)}, {vr(q,2)}, {vr(q+4,2)}")
        mean, var, mb, rs = q, q + 1, q + 2, q + 3
        A(f"v_mul_f32 v{mean}, 0x3b000000, v{mean}")
        A(f"v_mul_f32 v{var}, 0x3b000000, v{var}")
        A(f"v_fma_f32 v{var}, -v{mean}, v{mean}, v{var}")
        self.ln_scalars(mean, var, mb, rs)
        self.norm_pair(hp, h0, h1, mb, rs)
        A(f"ds_write_b32 v{hadr}, v{hp} offset:{L_HN}")
        A(f"ds_read_b64 {vr(q+4,2)}, v{radr} offset:{L_HN}")
        A("s_waitcnt lgkmcnt(0)")
        hn = q + 4
        acc = pb + 16
        for m in range(2):
            for c in range(8):
                A(f"v_dot2_f32_bf16 v{acc+8*m+c}, v{vW+16*m+c}, v{hn}, 0")
        for m in range(2):
            for c in range(8):
                A(f"v_dot2_f32_bf16 v{acc+8*m+c}, v{vW+16*m+8+c}, v{hn+1}, v{acc+8*m+c}")
        self.tswap(32, [(acc + c, acc + 8 + c) for c in range(8)])
        self.tswap(16, [(acc + c, acc + 4 + c) for c in range(4)])
        for c in ("row_ror:4", "row_ror:8", "quad_perm:[2,3,0,1]"):
            for r in range(4):
                self.dpp("v_add_f32", acc + r, acc + r, acc + r, c)
        A("s_mov_b32 exec_lo, 0x00030003")
        A("s_mov_b32 exec_hi, 0x00030003")
        for r in range(4):
            A(f"ds_write_b32 v{gadr}, v{acc+r} offset:{L_GU+16*r}")
        A("s_mov_b64 exec, -1")
        A(f"v_and_b32 v{vT0}, 0xf0, v{vV}")
        A(f"v_lshrrev_b32 v{radr}, 4, v{vL}")
        A(f"v_lshlrev_b32 v{radr}, 3, v{radr}")
        A(f"s_lshl_b32 s{sU0}, s3, 5")
        A(f"v_add_u32 v{radr}, s{sU0}, v{radr}")
        A(f"v_lshlrev_b32 v{hadr}, 1, v{vL}")
        A(f"v_add_u32 v{hadr}, s{sU0}, v{hadr}")
        A(f"v_lshlrev_b32 v{gadr}, 1, v{vT0}")
        A(f"v_lshrrev_b32 v{x0}, 5, v{vL}")
        A(f"v_lshl_add_u32 v{gadr}, v{x0}, 4, v{gadr}")
        A(f"v_bfe_u32 v{x0}, v{vL}, 4, 1")
        A(f"v_lshl_add_u32 v{gadr}, v{x0}, 3, v{gadr}")
        A(f"s_lshl_b32 s{sU1}, s4, 11")
        A(f"s_lshl_b32 s{sU0}, s3, 9")
        A(f"s_add_u32 s{sU1}, s{sU1}, s{sU0}")
        A(f"s_add_u32 s{sU1}, s{sU1}, {WS_A3}")
        A("s_waitcnt lgkmcnt(0)")
        A("s_barrier")
        A(f"ds_read_b128 {vr(q,4)}, v{vT0} offset:{L_GU}")
        A(f"ds_read_b128 {vr(q+4,4)}, v{vT0} offset:{L_GU+256}")
        A("s_waitcnt lgkmcnt(0)")
        A(f"v_pk_add_f32 {vr(q,2)}, {vr(q,2)}, {vr(q+2,2)}")
        A(f"v_pk_add_f32 {vr(q+4,2)}, {vr(q+4,2)}, {vr(q+6,2)}")
        A(f"v_add_f32 v{q}, v{q}, v{q+1}")
        A(f"v_add_f32 v{q+4}, v{q+4}, v{q+5}")
        self.rnd(q, q)
        self.rnd(q + 4, q + 4)
        A(f"v_max_f32 v{q}, 0, v{q}")
        A(f"v_mul_f32 v{q}, v{q}, v{q+4}")
        A(f"v_cvt_pk_bf16_f32 v{q}, v{q}, v{q}")
        A("s_mov_b64 exec, 0xffff")
        A(f"ds_write_b16 v{hadr}, v{q} offset:{L_F}")
        A("s_mov_b64 exec, -1")
        A(f"ds_read_b64 {vr(q+4,2)}, v{radr} offset:{L_F}")
        A("s_waitcnt lgkmcnt(0)")
        for c in range(8):
            A(f"v_dot2_f32_bf16 v{acc+c}, v{vW+32+c}, v{q+4}, 0")
        for c in range(8):
            A(f"v_dot2_f32_bf16 v{acc+c}, v{vW+40+c}, v{q+5}, v{acc+c}")
        self.tswap(32, [(acc + c, acc + 4 + c) for c in range(4)])
        self.tswap(16, [(acc + c, acc + 2 + c) for c in range(2)])
        A(f"buffer_store_dwordx2 {vr(acc,2)}, v{gadr}, {srd(sWS)}, s{sU1} offen sc1")
        self.stamp("dpub")
        A("s_lshl_b32 s9, s3, 8")
        A("s_add_u32 s9, s9, s4")
        A("s_cmp_ge_u32 s9, 32")
        A("s_cbranch_scc1 L_fin")
        A(f"v_lshrrev_b32 v{pa}, 2, v{vL}")
        A(f"v_lshlrev_b32 v{pa}, 11, v{pa}")
        A(f"v_and_b32 v{vT0}, 3, v{vL}")
        A(f"v_lshl_add_u32 v{pa}, v{vT0}, 4, v{pa}")
        A(f"s_lshl_b32 s{sU0}, s4, 6")
        for k in range(7):
            A(f"s_add_u32 s{10+k}, s{sU0}, {WS_A3 + k*32768}")
        self.poll_issue(loads[:7])
        A(f"v_lshlrev_b32 v{x0}, 3, v{vT0}")
        A(f"v_lshrrev_b32 v{x1}, 5, v{vL}")
        A(f"v_lshl_add_u32 v{x0}, v{x1}, 2, v{x0}")
        A(f"v_bfe_u32 v{x1}, v{vL}, 4, 1")
        A(f"v_lshl_add_u32 v{x0}, v{x1}, 1, v{x0}")
        A(f"s_lshl_b32 s{sU0}, s4, 5")
        A(f"v_add_u32 v{x0}, s{sU0}, v{x0}")
        A(f"ds_read_u16 v{x1}, v{x0} offset:{L_H}")
        A(f"v_mov_b32 v{hadr}, s{sE}")
        A("s_waitcnt lgkmcnt(0)")
        A(f"v_lshlrev_b32 v{x1}, 16, v{x1}")
        self.poll_finish(loads[:7], self.check_sentinel(pb))
        self.stamp("hop3")
        for (a_, b_) in ((0, 4), (1, 5), (2, 6), (0, 2), (1, 3), (0, 1)):
            for h in (0, 2):
                A(f"v_pk_add_f32 {vr(pb+4*a_+h,2)}, {vr(pb+4*a_+h,2)}, {vr(pb+4*b_+h,2)}")
        self.tswap(32, [(pb, pb + 2), (pb + 1, pb + 3)])
        self.tswap(16, [(pb, pb + 1)])
        self.dpp("v_add_f32", pb, pb, pb, "row_ror:4")
        self.dpp("v_add_f32", pb, pb, pb, "row_ror:8")
        self.rnd(pb, pb)
        A(f"v_add_f32 v{pb}, v{pb}, v{x1}")
        A(f"v_cvt_pk_bf16_f32 v{pb}, v{pb}, v{pb}")
        A("s_mov_b32 exec_lo, 0x000f000f")
        A("s_mov_b32 exec_hi, 0x000f000f")
        A(f"buffer_store_short v{pb}, v{x0}, {srd(sOUT)}, 0 offen")
        A("s_cmp_lg_u32 s4, 0")
        A("s_cbranch_scc1 L_fin")
        A("s_mov_b64 exec, 1")
        A(f"buffer_store_dword v{hadr}, v{vV}, {srd(sWS)}, 0 offen sc1")
        A("L_fin:")
        A("s_mov_b64 exec, -1")
        if self.stamps:
            self.stamp("end")
            A(f"s_getreg_b32 s{sU0}, hwreg(HW_REG_XCC_ID)")
            A(f"v_writelane_b32 v{vST}, s{sU0}, 63")
            A(f"s_lshl_b32 s{sU0}, s2, 10")
            A(f"s_lshl_b32 s{sU1}, s3, 8")
            A(f"s_add_u32 s{sU0}, s{sU0}, s{sU1}")
            A(f"s_add_u32 s{sU0}, s{sU0}, {WS_STAMP}")
            A(f"v_lshlrev_b32 v{vT0}, 2, v{vL}")
            A(f"buffer_store_dword v{vST}, v{vT0}, {srd(sWS)}, s{sU0} offen")
        A("L_end:")
        A("s_endpgm")

    def pace_wait(self, n):
        if not self.pace or n < self.pace_from or n > self.pace_to:
            return
        A = self.A
        lim = int(round(self.pace0 + n * self.pace))
        lp = self.lab("Lw")
        A(f"{lp}:")
        A("s_memrealtime vcc")
        A("s_waitcnt lgkmcnt(0)")
        A(f"s_sub_u32 vcc_lo, vcc_lo, s{sT0}")
        A(f"s_cmp_lt_u32 vcc_lo, {lim}")
        A(f"s_cbranch_scc1 {lp}")

    def body(self):
        R, G = self.R, 8
        N = 256
        self.prologue()
        self.stamp("start")
        ids = {}
        st = dict(cons=0, q=False, s=False, w=False)
        hooks = {}
        for at, fn in ((self.W0, self.prologue2), (self.qat, self.qphase), (self.pq, self.qpoll_issue),
                       (128 + self.ps, self.spoll_issue), (128, self.weights_prep_addr)):
            hooks.setdefault(at, []).append(fn)

        def consume_one():
            cons = st["cons"]
            if not st["q"]:
                self.qpoll_finish()
                st["q"] = True
            if cons >= 128 and not st["s"]:
                self.spoll_finish()
                st["s"] = True
            n = cons + G
            self.wait(ids[n - 1])
            if cons < 128:
                for i in range(cons, n):
                    self.consume_k(i)
            else:
                self.consume_v_group((cons - 128) // 8)
            st["cons"] = n
            if n == 128:
                self.stats_publish()

        def window(issued):
            if issued < self.W0:
                return 1 << 20
            return self.W if issued < self.Wat else self.W2

        issued = 0
        while issued < N:
            while issued + G - R > st["cons"]:
                consume_one()
            w = window(issued)
            if issued - (w - G) > 0:
                self.wait(ids[issued - (w - G) - 1])
            self.pace_wait(issued // G)
            for i in range(issued, issued + G):
                ids[i] = self.issue_stream(i)
            issued += G
            for h in hooks.get(issued, []):
                h()
            if not st["w"] and st["s"] and st["cons"] >= 176 and issued >= self.wat:
                for k in range(16):
                    self.issue_weight(k)
                st["w"] = True
            k = 0
            while k < self.slope and st["cons"] + G <= issued and ids[st["cons"] + G - 1] <= self.done:
                if not st["q"] and issued < self.holdq:
                    break
                if st["cons"] == 128 and not st["s"] and issued < min(128 + self.holds, N):
                    break
                consume_one()
                k += 1
        while st["cons"] < N:
            consume_one()
            if not st["w"] and st["cons"] >= 176:
                for k in range(16):
                    self.issue_weight(k)
                st["w"] = True
        self.tail()

    def text(self):
        self.body()
        lines, nn = asmlib.pad(self.L)
        hdr = [
            "; Fused pre-LN GQA decode block + ReGLU MLP, one persistent launch (generated by work/gen.py).",
            f"; @launch grid=(256,1,1) block=(256,1,1) lds={LDS_BYTES}",
            '.amdgcn_target "amdgcn-amd-amdhsa--gfx950"', ".text", f".globl {NAME}", ".p2align 8",
            f".type {NAME},@function", f"{NAME}:"]
        ftr = ['.section .rodata,"a"', ".p2align 6", f".amdhsa_kernel {NAME}",
               "  .amdhsa_next_free_vgpr 512", "  .amdhsa_next_free_sgpr 102", "  .amdhsa_accum_offset 256",
               "  .amdhsa_group_segment_fixed_size 0", "  .amdhsa_kernarg_size 96", "  .amdhsa_user_sgpr_count 2",
               "  .amdhsa_user_sgpr_kernarg_segment_ptr 1", "  .amdhsa_system_sgpr_workgroup_id_x 1", ".end_amdhsa_kernel"]
        if self.stamps:
            hdr.insert(1, "; stamps: " + " ".join(self.stamp_names))
        return "\n".join(hdr + lines + ftr) + "\n"


if __name__ == "__main__":
    out = sys.argv[1]
    kw = eval("dict(" + (sys.argv[2] if len(sys.argv) > 2 else "") + ")")
    open(out, "w").write(Gen(**kw).text())
```

```python
import sys, os
sys.path.insert(0, os.path.dirname(os.path.abspath(__file__)))
import asmlib

NAME = "sequential_preLN__gqa_block_cached__glu_gated_reglu__decode_kernel"

WS_QB = 0x1000
WS_FL = 0x6000
WS_ST = 0x8000
WS_O1 = 0x10000
WS_A2 = 0x100000
WS_A3 = 0x110000
WS_STAMP = 0x200000
WS_SIZE = 0x300000
L_QP = 0
L_CNT = 256
L_STW = 512
L_OP = 1024
L_S2 = 10240
L_LNS = 10752
L_H = 11264
L_HN = 12288
L_GU = 13312
L_F = 13824
LDS_BYTES = 16384
sG, sJ, sE, sTAG = 28, 29, 30, 31
sK, sV, sWS, sX, sWQ, sWO, sWG, sWU, sWD, sOUT = 32, 36, 40, 44, 48, 52, 56, 60, 64, 68
sBASE, sT, sLO, sHI = 72, 73, 74, 75
sT16, sT2, sSPIN, sT1, sP = 76, 77, 78, 79, 80
sU0, sU1, sU2 = 81, 82, 83
sT0 = 14
sM = 84
sMISS = 86
vL, vT0, vV, vK = 0, 1, 2, 3
vX3, vM, vLs, vST = 4, 5, 6, 7
vQ = 8
vA, vB, vC, vD = 12, 13, 14, 15
vZ = 16
vACC = 48
vAT = 80
vRD = 96
vBS = 112
vE = 120
vRING = 128
LOG2E = 0x3fb8aa3b
SPIN_LIMIT = 200000


def srd(i):
    return f"s[{i}:{i+3}]"


def vr(i, n=1, k="v"):
    return f"{k}{i}" if n == 1 else f"{k}[{i}:{i+n-1}]"


class Gen:
    def __init__(self, W=16, holdq=72, pq=56, holds=72, ps=56, slope=3, stamps=False, R=96, gmap=0, qat=24, W0=16, W2=None, Wat=256,
                 pace=0, pace0=0, pace_from=3, pace_to=31, wat=216, dbg=''):
        self.dbg = dbg
        self.W0, self.W2, self.Wat, self.wat = W0, (W2 or W), Wat, wat
        self.pace, self.pace0, self.pace_from, self.pace_to = pace, pace0, pace_from, pace_to
        self.gmap = gmap
        self.qat = qat
        self.W, self.holdq, self.pq, self.holds, self.ps, self.slope = W, holdq, pq, holds, ps, slope
        self.stamps = stamps
        self.R = R
        self.L = []
        self.nload = 0
        self.done = 0
        self.nlab = 0
        self.nstamp = 0
        self.stamp_names = []

    def A(self, s):
        self.L.append("  " + s if not s.endswith(":") else s)

    def lab(self, p="L"):
        self.nlab += 1
        return f"{p}_{self.nlab}"

    def load(self, text):
        self.A(text)
        self.nload += 1
        return self.nload

    def wait(self, lid):
        if lid <= self.done:
            return
        n = self.nload - lid
        self.A(f"s_waitcnt vmcnt({min(n, 63)})")
        self.done = lid if n <= 63 else self.nload - 63

    def waitall(self):
        self.A("s_waitcnt vmcnt(0)")
        self.done = self.nload

    def stamp(self, name):
        if not self.stamps:
            return
        A = self.A
        A("s_memrealtime vcc")
        A("s_waitcnt lgkmcnt(0)")
        A(f"v_writelane_b32 v{vST}, vcc_lo, {self.nstamp}")
        self.stamp_names.append(name)
        self.nstamp += 1

    def dpp(self, op, d, s0, s1, ctrl, bank=0xf, row=0xf):
        self.A(f"{op}_dpp v{d}, v{s0}, v{s1} {ctrl} row_mask:{row:#x} bank_mask:{bank:#x}")

    def wave_sum_to_sgpr(self, regs, sdst):
        for c in ("row_ror:8", "row_ror:4", "row_ror:2", "row_ror:1"):
            for r in regs:
                self.dpp("v_add_f32", r, r, r, c)
        for r in regs:
            self.dpp("v_add_f32", r, r, r, "row_bcast:15", row=0xa)
        for r in regs:
            self.dpp("v_add_f32", r, r, r, "row_bcast:31", row=0xc)
        for r, s in zip(regs, sdst):
            self.A(f"v_readlane_b32 s{s}, v{r}, 63")

    def allreduce_25(self, op, x, t):
        self.dpp(op, x, x, x, "row_ror:4")
        self.dpp(op, x, x, x, "row_ror:8")
        for sw in ("v_permlane16_swap_b32", "v_permlane32_swap_b32"):
            self.A(f"v_mov_b32 v{t}, v{x}")
            self.A(f"{sw} v{x}, v{t}")
            self.A(f"{op} v{x}, v{x}, v{t}")

    def tswap(self, which, pairs):
        sw = "v_permlane32_swap_b32" if which == 32 else "v_permlane16_swap_b32"
        for x, y in pairs:
            self.A(f"{sw} v{x}, v{y}")
        for x, y in pairs:
            self.A(f"v_add_f32 v{x}, v{x}, v{y}")

    def rnd(self, d, s):
        self.A(f"v_cvt_pk_bf16_f32 v{d}, 0, v{s}")

    def ln_scalars(self, vmean, vvar, vmb, vrs):
        A = self.A
        self.rnd(vmb, vmean)
        self.rnd(vrs, vvar)
        A(f"v_add_f32 v{vrs}, 0x3727c5ac, v{vrs}")
        self.rnd(vrs, vrs)
        A(f"v_sqrt_f32 v{vrs}, v{vrs}")
        self.rnd(vrs, vrs)
        A(f"v_rcp_f32 v{vrs}, v{vrs}")

    def norm_pair(self, d, lo, hi, vmb, vrs):
        A = self.A
        A(f"v_sub_f32 v{lo}, v{lo}, v{vmb}")
        A(f"v_sub_f32 v{hi}, v{hi}, v{vmb}")
        self.rnd(lo, lo)
        self.rnd(hi, hi)
        A(f"v_mul_f32 v{lo}, v{lo}, v{vrs}")
        A(f"v_mul_f32 v{hi}, v{hi}, v{vrs}")
        A(f"v_cvt_pk_bf16_f32 v{d}, v{lo}, v{hi}")

    def perm_pairs(self, dst, r0, r1):
        for u in range(4):
            self.A(f"v_perm_b32 v{dst+2*u}, v{r1+u}, v{r0+u}, s{sLO}")
            self.A(f"v_perm_b32 v{dst+2*u+1}, v{r1+u}, v{r0+u}, s{sHI}")

    def poll_issue(self, loads):
        ids = []
        for t in loads:
            ids.append(self.load(t))
        return ids

    def poll_finish(self, loads, check, counted_id=None):
        A = self.A
        n = len(loads)
        if counted_id is None:
            self.waitall()
        else:
            self.wait(counted_id)
        ldone, lretry = self.lab("Lpd"), self.lab("Lpr")

        def orall():
            if n == 1:
                A(f"s_mov_b64 s[{sM}:{sM+1}], s[{sMISS}:{sMISS+1}]")
            else:
                A(f"s_or_b64 s[{sM}:{sM+1}], s[{sMISS}:{sMISS+1}], s[{sMISS+2}:{sMISS+3}]")
                for k in range(2, n):
                    A(f"s_or_b64 s[{sM}:{sM+1}], s[{sM}:{sM+1}], s[{sMISS+2*k}:{sMISS+2*k+1}]")
            A(f"s_cmp_eq_u64 s[{sM}:{sM+1}], 0")
        for k in range(n):
            check(k)
        orall()
        A(f"s_cbranch_scc1 {ldone}")
        A(f"s_mov_b32 s{sSPIN}, {SPIN_LIMIT}")
        A(f"{lretry}:")
        for k in range(n):
            sk = self.lab("Lps")
            A(f"s_cmp_eq_u64 s[{sMISS+2*k}:{sMISS+2*k+1}], 0")
            A(f"s_cbranch_scc1 {sk}")
            A(f"s_mov_b64 exec, s[{sMISS+2*k}:{sMISS+2*k+1}]")
            for t in (loads[k] if isinstance(loads[k], (list, tuple)) else [loads[k]]):
                A(t)
            A(f"{sk}:")
        A("s_mov_b64 exec, -1")
        A("s_waitcnt vmcnt(0)")
        for k in range(n):
            sk = self.lab("Lpc")
            A(f"s_cmp_eq_u64 s[{sMISS+2*k}:{sMISS+2*k+1}], 0")
            A(f"s_cbranch_scc1 {sk}")
            check(k)
            A(f"{sk}:")
        orall()
        A(f"s_cbranch_scc1 {ldone}")
        A(f"s_sub_u32 s{sSPIN}, s{sSPIN}, 1")
        A(f"s_cmp_lg_u32 s{sSPIN}, 0")
        A(f"s_cbranch_scc1 {lretry}")
        A(f"{ldone}:")

    def check_sentinel(self, base):
        def chk(k):
            r = base + 4 * k
            t = vE + (k & 1)
            self.A(f"v_max3_u32 v{t}, v{r}, v{r+1}, v{r+2}")
            self.A(f"v_max_u32 v{t}, v{t}, v{r+3}")
            self.A(f"v_cmp_eq_u32 s[{sMISS+2*k}:{sMISS+2*k+1}], -1, v{t}")
        return chk

    def slot(self, i):
        s = i % self.R
        if s < 32:
            return ("a", s * 4)
        if s < 64:
            return ("v", vRING + (s - 32) * 4)
        return ("a", 128 + (s - 64) * 4)

    def issue_stream(self, i):
        t, r = self.slot(i)
        isK = i < 128
        a = i % 128
        off = (a >> 4) * (32 * 65536) + (a & 15) * 4096
        self.A(f"s_add_u32 s{sT}, s{sBASE}, {off}")
        return self.load(f"buffer_load_dwordx4 {vr(r,4,t)}, v{vK if isK else vV}, {srd(sK if isK else sV)}, s{sT} offen{'' if ('K' if isK else 'V') in self.dbg else ' nt'}")

    def k_dpp(self, a):
        d = vAT + (a & 3) * 4
        z = vZ + 8 * (a >> 5) + (a & 7)
        t = (a >> 3) & 3
        first = True
        for dp in (1, 2, 3):
            p = (t + dp) & 3
            ror = (4 * (t - p)) % 16
            self.dpp("v_add_f32", z, d + p, (d + t) if first else z, f"row_ror:{ror}", bank=1 << t)
            first = False
        if (a & 31) == 31:
            G = a >> 5
            zs = [vZ + 8 * G + i for i in range(8)]
            for z in zs:
                self.rnd(z, z)
            for z in zs:
                self.A(f"v_mul_f32 v{z}, 0x3db504f3, v{z}")
            for z in zs:
                self.rnd(z, z)
            if G == 0:
                self.A(f"v_max_f32 v{vM}, v{zs[0]}, v{zs[1]}")
                rest = zs[2:]
            else:
                rest = zs
            for i in range(0, len(rest), 2):
                self.A(f"v_max3_f32 v{vM}, v{vM}, v{rest[i]}, v{rest[i+1]}")

    def consume_k(self, a):
        t, r = self.slot(a)
        d = vAT + (a & 3) * 4
        self.A(f"v_mfma_f32_16x16x32_bf16 {vr(d,4)}, {vr(r,4,t)}, {vr(vQ,4)}, 0")
        if a >= 3:
            self.k_dpp(a - 3)
        if a == 127:
            for b in (125, 126, 127):
                self.k_dpp(b)

    def consume_v_group(self, gam):
        A = self.A
        G, t0 = gam >> 2, gam & 3
        pb = vZ + 8 * G
        if t0 == 0:
            B = pb
        else:
            B = vBS + (gam & 1) * 4
            for u in range(4):
                A(f"v_mov_b32_dpp v{B+u}, v{pb+u} row_ror:{16-4*t0} row_mask:0xf bank_mask:0xf")
        slots = [self.slot(128 + gam * 8 + tau) for tau in range(8)]
        for uu in range(4):
            src = []
            for tau in range(8):
                t, r = slots[tau]
                if t == "a":
                    tmp = vRD + (uu & 1) * 8 + tau
                    A(f"v_accvgpr_read_b32 v{tmp}, a{r+uu}")
                    src.append(tmp)
                else:
                    src.append(r + uu)
            alo = vAT + (uu & 1) * 8
            ahi = alo + 4
            for u in range(4):
                A(f"v_perm_b32 v{alo+u}, v{src[2*u+1]}, v{src[2*u]}, s{sLO}")
            for u in range(4):
                A(f"v_perm_b32 v{ahi+u}, v{src[2*u+1]}, v{src[2*u]}, s{sHI}")
            for e, a_ in ((2 * uu, alo), (2 * uu + 1, ahi)):
                acc = vr(vACC + 4 * e, 4)
                A(f"v_mfma_f32_16x16x32_bf16 {acc}, {vr(a_,4)}, {vr(B,4)}, {'0' if gam == 0 else acc}")

    def prologue(self):
        A = self.A
        A("s_cmp_ge_u32 s2, 256")
        A("s_cbranch_scc1 L_end")
        A("s_load_dwordx16 s[4:19], s[0:1], 0")
        A("s_load_dwordx8 s[20:27], s[0:1], 64")
        if self.pace:
            A("s_memrealtime vcc")
        A(f"v_lshrrev_b32 v{vT0}, 6, v0")
        A(f"v_and_b32 v{vL}, 63, v0")
        A(f"v_readfirstlane_b32 s3, v{vT0}")
        if self.gmap == 0:
            A(f"s_and_b32 s{sG}, s2, 7")
            A(f"s_lshr_b32 s{sJ}, s2, 3")
        else:
            A(f"s_lshr_b32 s{sG}, s2, 5")
            A(f"s_and_b32 s{sJ}, s2, 31")
        A(f"v_lshlrev_b32 v{vV}, 4, v{vL}")
        A(f"v_bfe_u32 v{vK}, v{vL}, 2, 2")
        A(f"v_lshlrev_b32 v{vK}, 8, v{vK}")
        A(f"v_lshrrev_b32 v{vT0}, 4, v{vL}")
        A(f"v_lshl_add_u32 v{vK}, v{vT0}, 6, v{vK}")
        A(f"v_and_b32 v{vT0}, 3, v{vL}")
        A(f"v_lshl_add_u32 v{vK}, v{vT0}, 4, v{vK}")
        A(f"v_lshrrev_b32 v{vB}, 1, v{vL}")
        A(f"v_lshlrev_b32 v{vA}, 14, v{vB}")
        A(f"v_and_b32 v{vT0}, 1, v{vL}")
        A(f"v_lshl_add_u32 v{vA}, v{vT0}, 4, v{vA}")
        A(f"v_lshlrev_b32 v{vB}, 2, v{vB}")
        A(f"v_and_b32 v{vC}, 31, v{vL}")
        A(f"v_lshlrev_b32 v{vC}, 3, v{vC}")
        A(f"v_lshrrev_b32 v{vT0}, 5, v{vL}")
        A(f"v_lshl_add_u32 v{vC}, v{vT0}, 2, v{vC}")
        for i in range(4):
            A(f"v_mov_b32 v{vQ+i}, -1")
        if self.stamps:
            A(f"v_mov_b32 v{vST}, 0")
        A(f"s_mov_b32 s{sLO}, 0x05040100")
        A(f"s_mov_b32 s{sHI}, 0x07060302")
        A(f"s_lshl_b32 s{sBASE}, s{sJ}, 16")
        A(f"s_lshl_b32 s{sT}, s3, 10")
        A(f"s_add_u32 s{sBASE}, s{sBASE}, s{sT}")
        A(f"s_lshl_b32 s{sT1}, s{sG}, 24")
        A(f"s_lshl_b32 s{sU0}, s{sG}, 10")
        A(f"s_lshl_b32 s{sU1}, s{sJ}, 5")
        A(f"s_add_u32 s{sU0}, s{sU0}, s{sU1}")
        A(f"s_lshl_b32 s{sU1}, s3, 20")
        A(f"s_add_u32 s{sU0}, s{sU0}, s{sU1}")
        A(f"s_lshl_b32 s{sU1}, s3, 8")
        A("s_waitcnt lgkmcnt(0)")
        A(f"s_load_dword s{sE}, s[26:27], 0")
        if self.pace:
            A(f"s_mov_b32 s{sT0}, vcc_lo")

        def mk(s, p, n):
            A(f"s_mov_b32 s{s}, s{p}")
            A(f"s_mov_b32 s{s+1}, s{p+1}")
            A(f"s_mov_b32 s{s+2}, {n}")
            A(f"s_mov_b32 s{s+3}, 0x20000")
        mk(sX, 4, 1024)
        mk(sWQ, 10, 0 if 'q' in self.dbg else 512 * 8192)
        zx = vZ
        self.id_x = self.load(f"buffer_load_dwordx4 {vr(zx,4)}, v{vV}, {srd(sX)}, 0 offen")
        self.load(f"buffer_load_dword v{zx+4}, v{vB}, {srd(sX)}, s{sU1} offen")
        self.id_xp = self.load(f"buffer_load_dword v{zx+5}, v{vB}, {srd(sX)}, s{sU1} offen offset:128")
        for i in range(4):
            off = (i & 1) * 8192 + (i >> 1) * 64 * 8192
            A(f"s_add_u32 s{sT}, s{sU0}, {off}")
            self.id_wq = self.load(f"buffer_load_dwordx4 {vr(zx+8+4*i,4)}, v{vA}, {srd(sWQ)}, s{sT} offen{' nt' if 'N' in self.dbg else ''}")
        A(f"s_add_u32 s{sK}, s6, s{sT1}")
        A(f"s_addc_u32 s{sK+1}, s7, 0")
        A(f"s_mov_b32 s{sK+2}, {16<<20}")
        A(f"s_mov_b32 s{sK+3}, 0x20000")
        A(f"s_add_u32 s{sV}, s8, s{sT1}")
        A(f"s_addc_u32 s{sV+1}, s9, 0")
        A(f"s_mov_b32 s{sV+2}, {16<<20}")
        A(f"s_mov_b32 s{sV+3}, 0x20000")
        mk(sWS, 26, WS_SIZE)
        self.mk = mk

    def prologue2(self):
        A = self.A
        mk = self.mk
        self.load(f"buffer_load_dword v{vX3}, v{vC}, {srd(sX)}, s{sU1} offen")
        A(f"s_lshl_b32 s{sU0}, s{sG}, 16")
        A(f"s_lshl_b32 s{sU1}, s{sJ}, 11")
        A(f"s_add_u32 s{sU0}, s{sU0}, s{sU1}")
        A(f"s_add_u32 s{sU0}, s{sU0}, {WS_O1}")
        A(f"s_lshl_b32 s{sU1}, s2, 11")
        A(f"s_add_u32 s{sU1}, s{sU1}, {WS_A3 - 2048}")
        A("s_cmp_lt_u32 s3, 2")
        A(f"s_cselect_b32 s{sU0}, s{sU0}, s{sU1}")
        A(f"s_lshl_b32 s{sU1}, s3, 10")
        A(f"s_add_u32 s{sU0}, s{sU0}, s{sU1}")
        A(f"buffer_store_dwordx4 {vr(vQ,4)}, v{vV}, {srd(sWS)}, s{sU0} offen sc1")
        A(f"s_lshl_b32 s{sP}, s{sG}, 12")
        A(f"s_lshr_b32 s{sU1}, s{sJ}, 4")
        A(f"s_lshl_b32 s{sU1}, s{sU1}, 11")
        A(f"s_add_u32 s{sP}, s{sP}, s{sU1}")
        A(f"s_and_b32 s{sU1}, s{sJ}, 15")
        A(f"s_lshl_b32 s{sU1}, s{sU1}, 7")
        A(f"s_add_u32 s{sP}, s{sP}, s{sU1}")
        A(f"s_add_u32 s{sP}, s{sP}, {WS_A2}")
        A("s_mov_b64 exec, 0xff")
        A(f"buffer_store_dwordx4 {vr(vQ,4)}, v{vV}, {srd(sWS)}, s{sP} offen sc1")
        A("s_mov_b64 exec, -1")
        mk(sWO, 12, 0 if 'o' in self.dbg else 4096 * 1024)
        A("s_lshr_b32 s5, s2, 5")
        A("s_lshl_b32 s5, s5, 3")
        A("s_and_b32 s4, s2, 7")
        A("s_add_u32 s4, s4, s5")
        A("s_lshl_b32 s4, s4, 2")
        A("s_bfe_u32 s5, s2, 0x20003")
        A("s_add_u32 s4, s4, s5")
        A("s_cmp_lt_u32 s4, 112")
        A("s_cselect_b32 s5, 1, 0")
        mk(sWG, 16, 0)
        mk(sWU, 18, 0)
        mk(sWD, 20, 0)
        if 'g' not in self.dbg:
            A(f"s_cselect_b32 s{sWG+2}, {512*3584}, 0")
            A(f"s_cselect_b32 s{sWU+2}, {512*3584}, 0")
        if 'd' not in self.dbg:
            A(f"s_cselect_b32 s{sWD+2}, {1792*1024}, 0")
        mk(sOUT, 22, 1024)

    def qphase(self):
        A = self.A
        zx = vZ
        t = vACC
        self.wait(self.id_xp)
        for u in range(4):
            A(f"v_lshlrev_b32 v{t+2*u}, 16, v{zx+u}")
            A(f"v_and_b32 v{t+2*u+1}, 0xffff0000, v{zx+u}")
        s = t + 8
        A(f"v_add_f32 v{s}, v{t}, v{t+1}")
        for i in range(2, 8):
            A(f"v_add_f32 v{s}, v{s}, v{t+i}")
        self.wave_sum_to_sgpr([s], [sU0])
        mean, var, mb, rs = t + 9, t + 10, t + 11, t + 12
        A(f"v_mov_b32 v{mean}, 0x3b000000")
        A(f"v_mul_f32 v{mean}, s{sU0}, v{mean}")
        for i in range(8):
            A(f"v_sub_f32 v{t+i}, v{t+i}, v{mean}")
        A(f"v_mul_f32 v{s}, v{t}, v{t}")
        for i in range(1, 8):
            A(f"v_fmac_f32 v{s}, v{t+i}, v{t+i}")
        self.wave_sum_to_sgpr([s], [sU0])
        A(f"v_mov_b32 v{var}, 0x3b000000")
        A(f"v_mul_f32 v{var}, s{sU0}, v{var}")
        self.ln_scalars(mean, var, mb, rs)
        xn = t + 14
        for i in range(2):
            A(f"v_lshlrev_b32 v{t+2*i}, 16, v{zx+4+i}")
            A(f"v_and_b32 v{t+2*i+1}, 0xffff0000, v{zx+4+i}")
            self.norm_pair(xn + i, t + 2 * i, t + 2 * i + 1, mb, rs)
        self.wait(self.id_wq)
        w = zx + 8
        p0, p1 = vAT, vAT + 8
        self.perm_pairs(p0, w, w + 4)
        self.perm_pairs(p1, w + 8, w + 12)
        acc = t + 16
        for c in range(8):
            A(f"v_dot2_f32_bf16 v{acc+c}, v{p0+c}, v{xn}, 0")
        for c in range(8):
            A(f"v_dot2_f32_bf16 v{acc+c}, v{p1+c}, v{xn+1}, v{acc+c}")
        self.tswap(32, [(acc + c, acc + c + 4) for c in range(4)])
        self.tswap(16, [(acc + c, acc + c + 2) for c in range(2)])
        for c in ("row_ror:4", "row_ror:8", "quad_perm:[2,3,0,1]"):
            for r in (acc, acc + 1):
                self.dpp("v_add_f32", r, r, r, c)
        ad = t
        A(f"v_and_b32 v{ad}, 1, v{vL}")
        A(f"v_lshlrev_b32 v{ad}, 5, v{ad}")
        A(f"v_lshrrev_b32 v{t+1}, 4, v{vL}")
        A(f"v_lshl_add_u32 v{ad}, v{t+1}, 3, v{ad}")
        A(f"s_lshl_b32 s{sU0}, s3, 6")
        A(f"v_add_u32 v{ad}, s{sU0}, v{ad}")
        A(f"v_mov_b32 v{t+2}, 0")
        A(f"s_mov_b32 exec_lo, 0x00030003")
        A(f"s_mov_b32 exec_hi, 0x00030003")
        A(f"ds_write_b64 v{ad}, {vr(acc,2)} offset:{L_QP}")
        A(f"ds_write_b32 v{t+2}, v{t+2} offset:{L_CNT}")
        A("s_mov_b64 exec, -1")
        A("s_waitcnt lgkmcnt(0)")
        A(f"s_add_u32 s{sE}, s{sE}, 1")
        A(f"s_and_b32 s{sTAG}, s{sE}, 0xff")
        A(f"s_mul_i32 s{sTAG}, s{sTAG}, 0x01010101")
        A(f"s_xor_b32 s{sTAG}, s{sTAG}, 0x33aa5500")
        A(f"s_and_b32 s{sT16}, s{sTAG}, 0xffff")
        A(f"s_mul_i32 s{sT2}, s{sT16}, 0x10001")
        A("s_barrier")
        skip = self.lab("Lq")
        A("s_cmp_lg_u32 s3, 0")
        A(f"s_cbranch_scc1 {skip}")
        A("s_mov_b64 exec, 0xf")
        for wv in range(4):
            A(f"ds_read_b128 {vr(t+4*wv,4)}, v{vV} offset:{L_QP+64*wv}")
        A(f"s_lshl_b32 s{sU0}, s{sG}, 11")
        A(f"s_lshl_b32 s{sU1}, s{sJ}, 6")
        A(f"s_add_u32 s{sU0}, s{sU0}, s{sU1}")
        A(f"s_add_u32 s{sU0}, s{sU0}, {WS_QB}")
        A("s_waitcnt lgkmcnt(0)")
        for i in range(4):
            A(f"v_add_f32 v{t+i}, v{t+i}, v{t+4+i}")
            A(f"v_add_f32 v{t+8+i}, v{t+8+i}, v{t+12+i}")
        for i in range(4):
            A(f"v_add_f32 v{t+i}, v{t+i}, v{t+8+i}")
        for i in range(4):
            self.rnd(t + i, t + i)
        for i in range(4):
            A(f"v_or_b32 v{t+i}, s{sT16}, v{t+i}")
        A(f"buffer_store_dwordx4 {vr(t,4)}, v{vV}, {srd(sWS)}, s{sU0} offen sc1")
        A("s_mov_b64 exec, -1")
        A(f"{skip}:")
        self.stamp("qpub")

    def qpoll_issue(self):
        A = self.A
        ad = vE + 2
        A(f"v_and_b32 v{ad}, 3, v{vL}")
        A(f"v_lshlrev_b32 v{ad}, 9, v{ad}")
        A(f"v_lshrrev_b32 v{vT0}, 2, v{vL}")
        A(f"v_lshl_add_u32 v{ad}, v{vT0}, 5, v{ad}")
        A(f"s_lshl_b32 s{sU2}, s{sG}, 11")
        A(f"s_add_u32 s{sU2}, s{sU2}, {WS_QB}")
        b = vACC
        self.q_loads = [[f"buffer_load_dwordx4 {vr(b,4)}, v{ad}, {srd(sWS)}, s{sU2} offen sc1",
                         f"buffer_load_dwordx4 {vr(b+4,4)}, v{ad}, {srd(sWS)}, s{sU2} offen offset:16 sc1"]]
        self.load(self.q_loads[0][0])
        self.id_q = self.load(self.q_loads[0][1])

    def qpoll_finish(self):
        A = self.A
        b = vACC
        t = vACC + 8

        def chk(k):
            for u in range(4):
                A(f"v_perm_b32 v{t+u}, v{b+2*u+1}, v{b+2*u}, s{sLO}")
            for u in range(4):
                A(f"v_xor_b32 v{t+u}, s{sT2}, v{t+u}")
            A(f"v_or3_b32 v{t}, v{t}, v{t+1}, v{t+2}")
            A(f"v_or_b32 v{t}, v{t}, v{t+3}")
            A(f"v_cmp_ne_u32 s[{sMISS}:{sMISS+1}], 0, v{t}")
        self.stamp("qchk")
        self.poll_finish(self.q_loads, chk, self.id_q)
        for u in range(4):
            A(f"v_perm_b32 v{vQ+u}, v{b+2*u+1}, v{b+2*u}, s{sHI}")
        self.stamp("qok")

    def expd(self, d, a, b):
        self.A(f"v_sub_f32 v{d}, v{a}, v{b}")
        self.A(f"v_mul_f32 v{d}, {LOG2E:#x}, v{d}")
        self.A(f"v_exp_f32 v{d}, v{d}")

    def stats_publish(self):
        A = self.A
        self.stamp("kdone")
        for z in range(32):
            A(f"v_sub_f32 v{vZ+z}, v{vZ+z}, v{vM}")
        for z in range(32):
            A(f"v_mul_f32 v{vZ+z}, {LOG2E:#x}, v{vZ+z}")
        for z in range(32):
            A(f"v_exp_f32 v{vZ+z}, v{vZ+z}")
        t = vAT
        for i in range(4):
            A(f"v_add_f32 v{t+i}, v{vZ+i}, v{vZ+4+i}")
        for z in range(8, 32):
            A(f"v_add_f32 v{t+(z&3)}, v{t+(z&3)}, v{vZ+z}")
        A(f"v_add_f32 v{t}, v{t}, v{t+1}")
        A(f"v_add_f32 v{t+2}, v{t+2}, v{t+3}")
        A(f"v_add_f32 v{vLs}, v{t}, v{t+2}")
        mw, lw, tt = t + 4, t + 5, t + 6
        A(f"v_mov_b32 v{mw}, v{vM}")
        self.allreduce_25("v_max_f32", mw, tt)
        self.expd(lw, vM, mw)
        A(f"v_mul_f32 v{lw}, v{lw}, v{vLs}")
        self.allreduce_25("v_add_f32", lw, tt)
        ad = t + 7
        A(f"v_lshlrev_b32 v{ad}, 3, v{vL}")
        A(f"s_lshl_b32 s{sU0}, s3, 5")
        A(f"v_add_u32 v{tt}, s{sU0}, v{ad}")
        A(f"v_mov_b32 v{t+8}, 0")
        A(f"v_mov_b32 v{t+9}, 1")
        A("s_mov_b64 exec, 0xf")
        A(f"ds_write_b64 v{tt}, {vr(mw,2)} offset:{L_STW}")
        A("s_mov_b64 exec, 1")
        A(f"ds_add_rtn_u32 v{t+10}, v{t+8}, v{t+9} offset:{L_CNT}")
        A("s_mov_b64 exec, -1")
        A(f"v_and_b32 v{ad}, 0x78, v{ad}")
        A("s_waitcnt lgkmcnt(0)")
        A(f"v_readfirstlane_b32 s{sU0}, v{t+10}")
        skip = self.lab("Ls")
        A(f"s_cmp_lg_u32 s{sU0}, 3")
        A(f"s_cbranch_scc1 {skip}")
        m, l = t + 8, t + 9
        A(f"ds_read_b64 {vr(m,2)}, v{ad} offset:{L_STW}")
        A(f"s_lshl_b32 s{sU0}, s{sG}, 11")
        A(f"s_lshl_b32 s{sU1}, s{sJ}, 6")
        A(f"s_add_u32 s{sU0}, s{sU0}, s{sU1}")
        A(f"s_add_u32 s{sU0}, s{sU0}, {WS_ST}")
        A(f"s_lshl_b32 s{sU1}, s2, 2")
        A(f"s_add_u32 s{sU1}, s{sU1}, {WS_FL}")
        A("s_waitcnt lgkmcnt(0)")
        o = t + 12
        A(f"v_mov_b32 v{o}, v{m}")
        self.dpp("v_max_f32", o, o, o, "row_ror:4")
        self.dpp("v_max_f32", o, o, o, "row_ror:8")
        self.expd(tt, m, o)
        A(f"v_mul_f32 v{l}, v{l}, v{tt}")
        self.dpp("v_add_f32", l, l, l, "row_ror:4")
        self.dpp("v_add_f32", l, l, l, "row_ror:8")
        A(f"v_or_b32 v{o}, s{sT16}, v{o}")
        A(f"v_and_b32 v{o+1}, 0xffff0000, v{l}")
        A(f"v_or_b32 v{o+1}, s{sT16}, v{o+1}")
        A(f"v_lshlrev_b32 v{o+2}, 16, v{l}")
        A(f"v_or_b32 v{o+2}, s{sT16}, v{o+2}")
        A(f"v_mov_b32 v{o+3}, s{sTAG}")
        A("s_mov_b64 exec, 0xf")
        A(f"buffer_store_dwordx4 {vr(o,4)}, v{vV}, {srd(sWS)}, s{sU0} offen sc1")
        A("s_mov_b64 exec, 1")
        A(f"buffer_store_dword v{o+3}, v{vV}, {srd(sWS)}, s{sU1} offen sc1")
        A("s_mov_b64 exec, -1")
        A(f"{skip}:")
        self.stamp("spub")

    def spoll_issue(self):
        A = self.A
        A(f"s_lshl_b32 s{sU2}, s{sG}, 11")
        A(f"s_add_u32 s{sU2}, s{sU2}, {WS_ST}")
        b = vACC
        self.s_loads = [[f"buffer_load_dwordx4 {vr(b,4)}, v{vV}, {srd(sWS)}, s{sU2} offen sc1",
                         f"buffer_load_dwordx4 {vr(b+4,4)}, v{vV}, {srd(sWS)}, s{sU2} offen offset:1024 sc1"]]
        self.load(self.s_loads[0][0])
        self.id_s = self.load(self.s_loads[0][1])

    def spoll_finish(self):
        A = self.A
        b = vACC
        t = vACC + 8

        def chk(k):
            A(f"v_perm_b32 v{t}, v{b+1}, v{b}, s{sLO}")
            A(f"v_perm_b32 v{t+1}, v{b+5}, v{b+4}, s{sLO}")
            A(f"v_perm_b32 v{t+2}, v{b+6}, v{b+2}, s{sLO}")
            for u in range(3):
                A(f"v_xor_b32 v{t+u}, s{sT2}, v{t+u}")
            A(f"v_or3_b32 v{t}, v{t}, v{t+1}, v{t+2}")
            A(f"v_cmp_ne_u32 s[{sMISS}:{sMISS+1}], 0, v{t}")
        self.stamp("schk")
        self.poll_finish(self.s_loads, chk, self.id_s)
        ma, mb, la, lb, M, tt, f = t, t + 1, t + 2, t + 3, t + 4, t + 5, t + 6
        A(f"v_and_b32 v{ma}, 0xffff0000, v{b}")
        A(f"v_and_b32 v{mb}, 0xffff0000, v{b+4}")
        A(f"v_perm_b32 v{la}, v{b+1}, v{b+2}, s{sHI}")
        A(f"v_perm_b32 v{lb}, v{b+5}, v{b+6}, s{sHI}")
        A(f"v_max_f32 v{M}, v{ma}, v{mb}")
        self.allreduce_25("v_max_f32", M, tt)
        self.expd(ma, ma, M)
        self.expd(mb, mb, M)
        A(f"v_mul_f32 v{la}, v{la}, v{ma}")
        A(f"v_fmac_f32 v{la}, v{lb}, v{mb}")
        self.allreduce_25("v_add_f32", la, tt)
        A(f"v_rcp_f32 v{lb}, v{la}")
        self.expd(f, vM, M)
        A(f"v_fma_f32 v{tt}, -v{la}, v{lb}, 1.0")
        A(f"v_fmac_f32 v{lb}, v{tt}, v{lb}")
        A(f"v_mul_f32 v{f}, v{f}, v{lb}")
        for z in range(32):
            A(f"v_mul_f32 v{vZ+z}, v{vZ+z}, v{f}")
        for G in range(4):
            for u in range(4):
                A(f"v_cvt_pk_bf16_f32 v{vZ+8*G+u}, v{vZ+8*G+2*u}, v{vZ+8*G+2*u+1}")
        self.stamp("sok")

    def weights_prep_addr(self):
        A = self.A
        A(f"v_bfe_u32 v{vA}, v{vL}, 3, 1")
        A(f"v_lshlrev_b32 v{vA}, 15, v{vA}")
        A(f"v_and_b32 v{vT0}, 7, v{vL}")
        A(f"v_lshl_add_u32 v{vA}, v{vT0}, 10, v{vA}")
        A(f"v_lshrrev_b32 v{vT0}, 4, v{vL}")
        A(f"v_lshl_add_u32 v{vA}, v{vT0}, 4, v{vA}")
        A(f"v_lshrrev_b32 v{vB}, 1, v{vL}")
        A(f"v_mul_u32_u24 v{vB}, {4*3584}, v{vB}")
        A(f"v_and_b32 v{vC}, 1, v{vL}")
        A(f"v_lshl_add_u32 v{vB}, v{vC}, 4, v{vB}")
        A(f"v_lshlrev_b32 v{vC}, 12, v{vT0}")
        A(f"v_and_b32 v{vT0}, 15, v{vL}")
        A(f"v_lshl_add_u32 v{vC}, v{vT0}, 4, v{vC}")
        A(f"s_lshl_b32 s6, s{sG}, 19")
        A(f"s_lshr_b32 s7, s{sJ}, 4")
        A("s_lshl_b32 s7, s7, 18")
        A("s_add_u32 s6, s6, s7")
        A("s_lshl_b32 s7, s3, 16")
        A("s_add_u32 s6, s6, s7")
        A(f"s_and_b32 s7, s{sJ}, 15")
        A("s_lshl_b32 s7, s7, 6")
        A("s_add_u32 s6, s6, s7")
        A(f"s_mul_i32 s7, s3, {128*3584}")
        A("s_lshl_b32 s8, s4, 5")
        A("s_add_u32 s7, s7, s8")
        if 'l' in self.dbg:
            A(f"v_mov_b32 v{vB}, v{vV}")
            A("s_lshl_b32 s7, s4, 14")
            A("s_lshl_b32 s8, s3, 12")
            A("s_add_u32 s7, s7, s8")
        if 'c' in self.dbg:
            A(f"v_lshrrev_b32 v{vB}, 3, v{vL}")
            A(f"v_mul_u32_u24 v{vB}, 3584, v{vB}")
            A(f"v_and_b32 v{vT0}, 7, v{vL}")
            A(f"v_lshl_add_u32 v{vB}, v{vT0}, 4, v{vB}")
            A("s_and_b32 s7, s4, 3")
            A("s_lshl_b32 s7, s7, 2")
            A("s_add_u32 s7, s7, s3")
            A(f"s_mul_i32 s7, s7, {32*3584}")
            A("s_lshr_b32 s8, s4, 2")
            A("s_lshl_b32 s8, s8, 7")
            A("s_add_u32 s7, s7, s8")
        A("s_lshl_b32 s8, s4, 14")
        A("s_lshl_b32 s9, s3, 8")
        A("s_add_u32 s8, s8, s9")

    def issue_weight(self, k):
        A = self.A
        grp, i = k >> 2, k & 3
        if grp == 0:
            A(f"s_add_u32 s{sT}, s6, {i*8192}")
            self.id_wo = self.load(f"buffer_load_dwordx4 {vr(vZ+8*i+4,4)}, v{vA}, {srd(sWO)}, s{sT} offen{'' if 'w' in self.dbg else ' nt'}")
        elif grp in (1, 2):
            A(f"s_add_u32 s{sT}, s7, {i*(1024 if 'l' in self.dbg else 8*3584 if 'c' in self.dbg else 3584)}")
            self.load(f"buffer_load_dwordx4 {vr(128+(k-4)*4,4,'a')}, v{vB}, {srd(sWG if grp == 1 else sWU)}, s{sT} offen{' nt' if 'n' in self.dbg else ''}")
        else:
            self.load(f"buffer_load_dwordx4 {vr(128+(k-4)*4,4,'a')}, v{vC}, {srd(sWD)}, s8 offen offset:{i*1024} nt")

    def tail(self):
        A = self.A
        self.stamp("vdone")
        t = vAT
        ad = vE + 2
        A(f"v_and_b32 v{ad}, 3, v{vL}")
        A(f"v_lshrrev_b32 v{vT0}, 4, v{vL}")
        A(f"v_lshl_add_u32 v{ad}, v{ad}, 2, v{vT0}")
        A(f"v_mul_u32_u24 v{ad}, 144, v{ad}")
        A(f"s_mul_i32 s{sU0}, s3, 2304")
        A(f"v_add_u32 v{ad}, s{sU0}, v{ad}")
        rd = vE + 3
        A(f"s_and_b32 s{sU1}, s3, 1")
        A(f"s_mul_i32 s{sU0}, s{sU1}, {8*144}")
        A(f"v_lshrrev_b32 v{rd}, 3, v{vL}")
        A(f"v_mul_u32_u24 v{rd}, 144, v{rd}")
        A(f"v_and_b32 v{vT0}, 7, v{vL}")
        A(f"v_lshl_add_u32 v{rd}, v{vT0}, 4, v{rd}")
        A(f"v_add_u32 v{rd}, s{sU0}, v{rd}")
        A("s_mov_b32 exec_lo, 0x000f000f")
        A("s_mov_b32 exec_hi, 0x000f000f")
        for e in range(8):
            A(f"ds_write_b128 v{ad}, {vr(vACC+4*e,4)} offset:{L_OP+16*e}")
        A("s_mov_b64 exec, -1")
        A(f"s_lshl_b32 s{sU0}, s{sG}, 16")
        A(f"s_add_u32 s{sU2}, s{sU0}, {WS_O1}")
        A(f"s_lshl_b32 s{sU0}, s{sJ}, 11")
        A(f"s_add_u32 s{sU0}, s{sU0}, s{sU2}")
        A(f"s_lshl_b32 s{sU1}, s{sU1}, 10")
        A(f"s_add_u32 s{sU0}, s{sU0}, s{sU1}")
        A("s_waitcnt lgkmcnt(0)")
        A("s_barrier")
        skip = self.lab("Lo")
        A("s_cmp_gt_u32 s3, 1")
        A(f"s_cbranch_scc1 {skip}")
        for wv in range(4):
            A(f"ds_read_b128 {vr(t+4*wv,4)}, v{rd} offset:{L_OP+2304*wv}")
        A("s_waitcnt lgkmcnt(2)")
        A(f"v_pk_add_f32 {vr(t,2)}, {vr(t,2)}, {vr(t+4,2)}")
        A(f"v_pk_add_f32 {vr(t+2,2)}, {vr(t+2,2)}, {vr(t+6,2)}")
        A("s_waitcnt lgkmcnt(0)")
        A(f"v_pk_add_f32 {vr(t+8,2)}, {vr(t+8,2)}, {vr(t+12,2)}")
        A(f"v_pk_add_f32 {vr(t+10,2)}, {vr(t+10,2)}, {vr(t+14,2)}")
        A(f"v_pk_add_f32 {vr(t,2)}, {vr(t,2)}, {vr(t+8,2)}")
        A(f"v_pk_add_f32 {vr(t+2,2)}, {vr(t+2,2)}, {vr(t+10,2)}")
        A(f"buffer_store_dwordx4 {vr(t,4)}, v{vV}, {srd(sWS)}, s{sU0} offen sc1")
        A(f"{skip}:")
        self.stamp("opub")
        pa = vE + 2
        A(f"v_lshrrev_b32 v{pa}, 4, v{vL}")
        A(f"v_lshlrev_b32 v{pa}, 11, v{pa}")
        A(f"v_and_b32 v{vT0}, 15, v{vL}")
        A(f"v_lshl_add_u32 v{pa}, v{vT0}, 4, v{pa}")
        A(f"s_lshr_b32 s{sU0}, s{sJ}, 4")
        A(f"s_lshl_b32 s{sU0}, s{sU0}, 10")
        A(f"s_add_u32 s{sU2}, s{sU2}, s{sU0}")
        A(f"s_lshl_b32 s{sU0}, s3, 8")
        A(f"s_add_u32 s{sU2}, s{sU2}, s{sU0}")
        for k in range(8):
            A(f"s_add_u32 s{10+k}, s{sU2}, {k*8192}")
        pb = vRING
        loads = [f"buffer_load_dwordx4 {vr(pb+4*k,4)}, v{pa}, {srd(sWS)}, s{10+k} offen sc1" for k in range(8)]
        self.poll_issue(loads)
        self.wait(self.id_wo)
        w2 = vACC
        self.perm_pairs(w2, vZ + 4, vZ + 12)
        self.perm_pairs(w2 + 8, vZ + 20, vZ + 28)
        self.poll_finish(loads, self.check_sentinel(pb))
        self.stamp("hop1")
        for step in (4, 2, 1):
            for k in range(step):
                for h in (0, 2):
                    A(f"v_pk_add_f32 {vr(pb+4*k+h,2)}, {vr(pb+4*k+h,2)}, {vr(pb+4*(k+step)+h,2)}")
        self.tswap(32, [(pb, pb + 2), (pb + 1, pb + 3)])
        A(f"v_mov_b32 v{pb+2}, v{pb}")
        A(f"v_mov_b32 v{pb+3}, v{pb+1}")
        self.tswap(16, [(pb, pb + 2), (pb + 1, pb + 3)])
        A(f"v_cvt_pk_bf16_f32 v{pb}, v{pb}, v{pb+1}")
        A(f"v_mov_b32 v{pb+1}, v{pb}")
        A(f"v_permlane32_swap_b32 v{pb}, v{pb+1}")
        acc = pb + 4
        for c in range(8):
            A(f"v_dot2_f32_bf16 v{acc+c}, v{w2+c}, v{pb}, 0")
        for c in range(8):
            A(f"v_dot2_f32_bf16 v{acc+c}, v{w2+8+c}, v{pb+1}, v{acc+c}")
        r1 = acc + 8
        for c in range(4):
            self.dpp("v_add_f32", r1 + c, acc + c, acc + c, "row_ror:8", bank=0x3)
            self.dpp("v_add_f32", r1 + c, acc + c + 4, acc + c + 4, "row_ror:8", bank=0xc)
        r2 = r1 + 4
        for c in range(2):
            self.dpp("v_add_f32", r2 + c, r1 + c, r1 + c, "row_ror:12", bank=0x5)
            self.dpp("v_add_f32", r2 + c, r1 + c + 2, r1 + c + 2, "row_ror:4", bank=0xa)
        for q in ("quad_perm:[1,0,3,2]", "quad_perm:[2,3,0,1]"):
            for c in range(2):
                self.dpp("v_add_f32", r2 + c, r2 + c, r2 + c, q)
        A(f"v_lshlrev_b32 v{vT0}, 1, v{vL}")
        A(f"s_lshl_b32 s{sU0}, s3, 7")
        A(f"v_add_u32 v{vT0}, s{sU0}, v{vT0}")
        A("s_mov_b32 exec_lo, 0x11111111")
        A("s_mov_b32 exec_hi, 0x11111111")
        A(f"ds_write_b64 v{vT0}, {vr(r2,2)} offset:{L_S2}")
        A("s_mov_b64 exec, -1")
        A("s_waitcnt lgkmcnt(0)")
        A("s_barrier")
        skip = self.lab("La")
        A("s_cmp_lg_u32 s3, 0")
        A(f"s_cbranch_scc1 {skip}")
        A("s_mov_b64 exec, 0xff")
        for wv in range(4):
            A(f"ds_read_b128 {vr(t+4*wv,4)}, v{vV} offset:{L_S2+128*wv}")
        A("s_waitcnt lgkmcnt(2)")
        A(f"v_pk_add_f32 {vr(t,2)}, {vr(t,2)}, {vr(t+4,2)}")
        A(f"v_pk_add_f32 {vr(t+2,2)}, {vr(t+2,2)}, {vr(t+6,2)}")
        A("s_waitcnt lgkmcnt(0)")
        A(f"v_pk_add_f32 {vr(t+8,2)}, {vr(t+8,2)}, {vr(t+12,2)}")
        A(f"v_pk_add_f32 {vr(t+10,2)}, {vr(t+10,2)}, {vr(t+14,2)}")
        A(f"v_pk_add_f32 {vr(t,2)}, {vr(t,2)}, {vr(t+8,2)}")
        A(f"v_pk_add_f32 {vr(t+2,2)}, {vr(t+2,2)}, {vr(t+10,2)}")
        A(f"buffer_store_dwordx4 {vr(t,4)}, v{vV}, {srd(sWS)}, s{sP} offen sc1")
        A("s_mov_b64 exec, -1")
        A(f"{skip}:")
        self.stamp("apub")
        A("s_cmp_eq_u32 s5, 0")
        A("s_cbranch_scc1 L_fin")
        fb = vRING + 64
        A(f"s_mov_b32 s{sU2}, {WS_FL}")
        fl = [f"buffer_load_dwordx4 {vr(fb,4)}, v{vV}, {srd(sWS)}, s{sU2} offen sc1"]
        self.poll_issue(fl)
        vW = vRING + 72
        for m in range(3):
            for i in range(16):
                A(f"v_accvgpr_read_b32 v{vRD+i}, a{128+16*m+i}")
            self.perm_pairs(vW + 16 * m, vRD, vRD + 4)
            self.perm_pairs(vW + 16 * m + 8, vRD + 8, vRD + 12)

        def chkf(k):
            for u in range(4):
                A(f"v_xor_b32 v{vE+4+u}, s{sTAG}, v{fb+u}")
            A(f"v_or3_b32 v{vE+4}, v{vE+4}, v{vE+5}, v{vE+6}")
            A(f"v_or_b32 v{vE+4}, v{vE+4}, v{vE+7}")
            A(f"v_cmp_ne_u32 s[{sMISS}:{sMISS+1}], 0, v{vE+4}")
        self.poll_finish(fl, chkf)
        A(f"v_lshrrev_b32 v{pa}, 5, v{vL}")
        A(f"v_lshlrev_b32 v{pa}, 11, v{pa}")
        A(f"v_and_b32 v{vT0}, 31, v{vL}")
        A(f"v_lshl_add_u32 v{pa}, v{vT0}, 4, v{pa}")
        A(f"s_lshl_b32 s{sU0}, s3, 9")
        for k in range(8):
            A(f"s_add_u32 s{10+k}, s{sU0}, {WS_A2 + k*4096}")
        self.poll_issue(loads)
        x0, x1, hadr, radr, gadr = vE + 4, vE + 5, vE + 6, vE + 7, vE + 3
        A(f"v_lshlrev_b32 v{x0}, 16, v{vX3}")
        A(f"v_and_b32 v{x1}, 0xffff0000, v{vX3}")
        A(f"v_lshlrev_b32 v{hadr}, 3, v{vT0}")
        A(f"v_lshrrev_b32 v{vT0}, 5, v{vL}")
        A(f"v_lshl_add_u32 v{hadr}, v{vT0}, 2, v{hadr}")
        A(f"s_lshl_b32 s{sU0}, s3, 8")
        A(f"v_add_u32 v{hadr}, s{sU0}, v{hadr}")
        A(f"v_lshrrev_b32 v{radr}, 1, v{vL}")
        A(f"v_lshlrev_b32 v{radr}, 3, v{radr}")
        A(f"v_add_u32 v{radr}, s{sU0}, v{radr}")
        A(f"v_lshrrev_b32 v{gadr}, 5, v{vL}")
        A(f"v_lshlrev_b32 v{gadr}, 8, v{gadr}")
        A(f"v_and_b32 v{vT0}, 1, v{vL}")
        A(f"v_lshl_add_u32 v{gadr}, v{vT0}, 7, v{gadr}")
        A(f"v_bfe_u32 v{vT0}, v{vL}, 4, 1")
        A(f"v_lshl_add_u32 v{gadr}, v{vT0}, 6, v{gadr}")
        A(f"s_lshl_b32 s{sU0}, s3, 2")
        A(f"v_add_u32 v{gadr}, s{sU0}, v{gadr}")
        self.poll_finish(loads, self.check_sentinel(pb))
        self.stamp("hop2")
        for step in (4, 2, 1):
            for k in range(step):
                for h in (0, 2):
                    A(f"v_pk_add_f32 {vr(pb+4*k+h,2)}, {vr(pb+4*k+h,2)}, {vr(pb+4*(k+step)+h,2)}")
        self.tswap(32, [(pb, pb + 2), (pb + 1, pb + 3)])
        h0, h1, s1, s2, hp = pb, pb + 1, pb + 4, pb + 5, pb + 6
        self.rnd(h0, h0)
        self.rnd(h1, h1)
        A(f"v_add_f32 v{h0}, v{h0}, v{x0}")
        A(f"v_add_f32 v{h1}, v{h1}, v{x1}")
        A(f"v_cvt_pk_bf16_f32 v{hp}, v{h0}, v{h1}")
        A(f"v_lshlrev_b32 v{h0}, 16, v{hp}")
        A(f"v_and_b32 v{h1}, 0xffff0000, v{hp}")
        A(f"ds_write_b32 v{hadr}, v{hp} offset:{L_H}")
        A(f"v_add_f32 v{s1}, v{h0}, v{h1}")
        A(f"v_mul_f32 v{s2}, v{h0}, v{h0}")
        A(f"v_fmac_f32 v{s2}, v{h1}, v{h1}")
        for c in ("row_ror:8", "row_ror:4", "row_ror:2", "row_ror:1"):
            for r in (s1, s2):
                self.dpp("v_add_f32", r, r, r, c)
        for r in (s1, s2):
            self.dpp("v_add_f32", r, r, r, "row_bcast:15", row=0xa)
        for r in (s1, s2):
            self.dpp("v_add_f32", r, r, r, "row_bcast:31", row=0xc)
        A(f"s_lshl_b32 s{sU0}, s3, 3")
        A(f"v_mov_b32 v{vT0}, s{sU0}")
        A(f"v_mov_b32 v{pb+7}, 0")
        A("s_mov_b32 exec_lo, 0")
        A("s_mov_b32 exec_hi, 0x80000000")
        A(f"ds_write_b64 v{vT0}, {vr(s1,2)} offset:{L_LNS}")
        A("s_mov_b64 exec, -1")
        A("s_waitcnt lgkmcnt(0)")
        A("s_barrier")
        q = pb + 8
        A(f"ds_read_b128 {vr(q,4)}, v{pb+7} offset:{L_LNS}")
        A(f"ds_read_b128 {vr(q+4,4)}, v{pb+7} offset:{L_LNS+16}")
        A("s_waitcnt lgkmcnt(0)")
        A(f"v_pk_add_f32 {vr(q,2)}, {vr(q,2)}, {vr(q+2,2)}")
        A(f"v_pk_add_f32 {vr(q+4,2)}, {vr(q+4,2)}, {vr(q+6,2)}")
        A(f"v_pk_add_f32 {vr(q,2)}, {vr(q,2)}, {vr(q+4,2)}")
        mean, var, mb, rs = q, q + 1, q + 2, q + 3
        A(f"v_mul_f32 v{mean}, 0x3b000000, v{mean}")
        A(f"v_mul_f32 v{var}, 0x3b000000, v{var}")
        A(f"v_fma_f32 v{var}, -v{mean}, v{mean}, v{var}")
        self.ln_scalars(mean, var, mb, rs)
        self.norm_pair(hp, h0, h1, mb, rs)
        A(f"ds_write_b32 v{hadr}, v{hp} offset:{L_HN}")
        A(f"ds_read_b64 {vr(q+4,2)}, v{radr} offset:{L_HN}")
        A("s_waitcnt lgkmcnt(0)")
        hn = q + 4
        acc = pb + 16
        for m in range(2):
            for c in range(8):
                A(f"v_dot2_f32_bf16 v{acc+8*m+c}, v{vW+16*m+c}, v{hn}, 0")
        for m in range(2):
            for c in range(8):
                A(f"v_dot2_f32_bf16 v{acc+8*m+c}, v{vW+16*m+8+c}, v{hn+1}, v{acc+8*m+c}")
        self.tswap(32, [(acc + c, acc + 8 + c) for c in range(8)])
        self.tswap(16, [(acc + c, acc + 4 + c) for c in range(4)])
        for c in ("row_ror:4", "row_ror:8", "quad_perm:[2,3,0,1]"):
            for r in range(4):
                self.dpp("v_add_f32", acc + r, acc + r, acc + r, c)
        A("s_mov_b32 exec_lo, 0x00030003")
        A("s_mov_b32 exec_hi, 0x00030003")
        for r in range(4):
            A(f"ds_write_b32 v{gadr}, v{acc+r} offset:{L_GU+16*r}")
        A("s_mov_b64 exec, -1")
        A(f"v_and_b32 v{vT0}, 0xf0, v{vV}")
        A(f"v_lshrrev_b32 v{radr}, 4, v{vL}")
        A(f"v_lshlrev_b32 v{radr}, 3, v{radr}")
        A(f"s_lshl_b32 s{sU0}, s3, 5")
        A(f"v_add_u32 v{radr}, s{sU0}, v{radr}")
        A(f"v_lshlrev_b32 v{hadr}, 1, v{vL}")
        A(f"v_add_u32 v{hadr}, s{sU0}, v{hadr}")
        A(f"v_lshlrev_b32 v{gadr}, 1, v{vT0}")
        A(f"v_lshrrev_b32 v{x0}, 5, v{vL}")
        A(f"v_lshl_add_u32 v{gadr}, v{x0}, 4, v{gadr}")
        A(f"v_bfe_u32 v{x0}, v{vL}, 4, 1")
        A(f"v_lshl_add_u32 v{gadr}, v{x0}, 3, v{gadr}")
        A(f"s_lshl_b32 s{sU1}, s4, 11")
        A(f"s_lshl_b32 s{sU0}, s3, 9")
        A(f"s_add_u32 s{sU1}, s{sU1}, s{sU0}")
        A(f"s_add_u32 s{sU1}, s{sU1}, {WS_A3}")
        A("s_waitcnt lgkmcnt(0)")
        A("s_barrier")
        A(f"ds_read_b128 {vr(q,4)}, v{vT0} offset:{L_GU}")
        A(f"ds_read_b128 {vr(q+4,4)}, v{vT0} offset:{L_GU+256}")
        A("s_waitcnt lgkmcnt(0)")
        A(f"v_pk_add_f32 {vr(q,2)}, {vr(q,2)}, {vr(q+2,2)}")
        A(f"v_pk_add_f32 {vr(q+4,2)}, {vr(q+4,2)}, {vr(q+6,2)}")
        A(f"v_add_f32 v{q}, v{q}, v{q+1}")
        A(f"v_add_f32 v{q+4}, v{q+4}, v{q+5}")
        self.rnd(q, q)
        self.rnd(q + 4, q + 4)
        A(f"v_max_f32 v{q}, 0, v{q}")
        A(f"v_mul_f32 v{q}, v{q}, v{q+4}")
        A(f"v_cvt_pk_bf16_f32 v{q}, v{q}, v{q}")
        A("s_mov_b64 exec, 0xffff")
        A(f"ds_write_b16 v{hadr}, v{q} offset:{L_F}")
        A("s_mov_b64 exec, -1")
        A(f"ds_read_b64 {vr(q+4,2)}, v{radr} offset:{L_F}")
        A("s_waitcnt lgkmcnt(0)")
        for c in range(8):
            A(f"v_dot2_f32_bf16 v{acc+c}, v{vW+32+c}, v{q+4}, 0")
        for c in range(8):
            A(f"v_dot2_f32_bf16 v{acc+c}, v{vW+40+c}, v{q+5}, v{acc+c}")
        self.tswap(32, [(acc + c, acc + 4 + c) for c in range(4)])
        self.tswap(16, [(acc + c, acc + 2 + c) for c in range(2)])
        A(f"buffer_store_dwordx2 {vr(acc,2)}, v{gadr}, {srd(sWS)}, s{sU1} offen sc1")
        self.stamp("dpub")
        A("s_lshl_b32 s9, s3, 8")
        A("s_add_u32 s9, s9, s4")
        A("s_cmp_ge_u32 s9, 32")
        A("s_cbranch_scc1 L_fin")
        A(f"v_lshrrev_b32 v{pa}, 2, v{vL}")
        A(f"v_lshlrev_b32 v{pa}, 11, v{pa}")
        A(f"v_and_b32 v{vT0}, 3, v{vL}")
        A(f"v_lshl_add_u32 v{pa}, v{vT0}, 4, v{pa}")
        A(f"s_lshl_b32 s{sU0}, s4, 6")
        for k in range(7):
            A(f"s_add_u32 s{10+k}, s{sU0}, {WS_A3 + k*32768}")
        self.poll_issue(loads[:7])
        A(f"v_lshlrev_b32 v{x0}, 3, v{vT0}")
        A(f"v_lshrrev_b32 v{x1}, 5, v{vL}")
        A(f"v_lshl_add_u32 v{x0}, v{x1}, 2, v{x0}")
        A(f"v_bfe_u32 v{x1}, v{vL}, 4, 1")
        A(f"v_lshl_add_u32 v{x0}, v{x1}, 1, v{x0}")
        A(f"s_lshl_b32 s{sU0}, s4, 5")
        A(f"v_add_u32 v{x0}, s{sU0}, v{x0}")
        A(f"ds_read_u16 v{x1}, v{x0} offset:{L_H}")
        A(f"v_mov_b32 v{hadr}, s{sE}")
        A("s_waitcnt lgkmcnt(0)")
        A(f"v_lshlrev_b32 v{x1}, 16, v{x1}")
        self.poll_finish(loads[:7], self.check_sentinel(pb))
        self.stamp("hop3")
        for (a_, b_) in ((0, 4), (1, 5), (2, 6), (0, 2), (1, 3), (0, 1)):
            for h in (0, 2):
                A(f"v_pk_add_f32 {vr(pb+4*a_+h,2)}, {vr(pb+4*a_+h,2)}, {vr(pb+4*b_+h,2)}")
        self.tswap(32, [(pb, pb + 2), (pb + 1, pb + 3)])
        self.tswap(16, [(pb, pb + 1)])
        self.dpp("v_add_f32", pb, pb, pb, "row_ror:4")
        self.dpp("v_add_f32", pb, pb, pb, "row_ror:8")
        self.rnd(pb, pb)
        A(f"v_add_f32 v{pb}, v{pb}, v{x1}")
        A(f"v_cvt_pk_bf16_f32 v{pb}, v{pb}, v{pb}")
        A("s_mov_b32 exec_lo, 0x000f000f")
        A("s_mov_b32 exec_hi, 0x000f000f")
        A(f"buffer_store_short v{pb}, v{x0}, {srd(sOUT)}, 0 offen")
        A("s_cmp_lg_u32 s4, 0")
        A("s_cbranch_scc1 L_fin")
        A("s_mov_b64 exec, 1")
        A(f"buffer_store_dword v{hadr}, v{vV}, {srd(sWS)}, 0 offen sc1")
        A("L_fin:")
        A("s_mov_b64 exec, -1")
        if self.stamps:
            self.stamp("end")
            A(f"s_getreg_b32 s{sU0}, hwreg(HW_REG_XCC_ID)")
            A(f"v_writelane_b32 v{vST}, s{sU0}, 63")
            A(f"s_lshl_b32 s{sU0}, s2, 10")
            A(f"s_lshl_b32 s{sU1}, s3, 8")
            A(f"s_add_u32 s{sU0}, s{sU0}, s{sU1}")
            A(f"s_add_u32 s{sU0}, s{sU0}, {WS_STAMP}")
            A(f"v_lshlrev_b32 v{vT0}, 2, v{vL}")
            A(f"buffer_store_dword v{vST}, v{vT0}, {srd(sWS)}, s{sU0} offen")
        A("L_end:")
        A("s_endpgm")

    def pace_wait(self, n):
        if not self.pace or n < self.pace_from or n > self.pace_to:
            return
        A = self.A
        lim = int(round(self.pace0 + n * self.pace))
        lp = self.lab("Lw")
        A(f"{lp}:")
        A("s_memrealtime vcc")
        A("s_waitcnt lgkmcnt(0)")
        A(f"s_sub_u32 vcc_lo, vcc_lo, s{sT0}")
        A(f"s_cmp_lt_u32 vcc_lo, {lim}")
        A(f"s_cbranch_scc1 {lp}")

    def body(self):
        R, G = self.R, 8
        N = 256
        self.prologue()
        self.stamp("start")
        ids = {}
        st = dict(cons=0, q=False, s=False, w=False)
        hooks = {}
        for at, fn in ((self.W0, self.prologue2), (self.qat, self.qphase), (self.pq, self.qpoll_issue),
                       (128 + self.ps, self.spoll_issue), (128, self.weights_prep_addr)):
            hooks.setdefault(at, []).append(fn)

        def consume_one():
            cons = st["cons"]
            if not st["q"]:
                self.qpoll_finish()
                st["q"] = True
            if cons >= 128 and not st["s"]:
                self.spoll_finish()
                st["s"] = True
            n = cons + G
            self.wait(ids[n - 1])
            if cons < 128:
                for i in range(cons, n):
                    self.consume_k(i)
            else:
                self.consume_v_group((cons - 128) // 8)
            st["cons"] = n
            if n == 128:
                self.stats_publish()

        def window(issued):
            if issued < self.W0:
                return 1 << 20
            return self.W if issued < self.Wat else self.W2

        issued = 0
        while issued < N:
            while issued + G - R > st["cons"]:
                consume_one()
            w = window(issued)
            if issued - (w - G) > 0:
                self.wait(ids[issued - (w - G) - 1])
            self.pace_wait(issued // G)
            for i in range(issued, issued + G):
                ids[i] = self.issue_stream(i)
            issued += G
            for h in hooks.get(issued, []):
                h()
            if not st["w"] and st["s"] and st["cons"] >= 176 and issued >= self.wat:
                for k in range(16):
                    self.issue_weight(k)
                st["w"] = True
            k = 0
            while k < self.slope and st["cons"] + G <= issued and ids[st["cons"] + G - 1] <= self.done:
                if not st["q"] and issued < self.holdq:
                    break
                if st["cons"] == 128 and not st["s"] and issued < min(128 + self.holds, N):
                    break
                consume_one()
                k += 1
        while st["cons"] < N:
            consume_one()
            if not st["w"] and st["cons"] >= 176:
                for k in range(16):
                    self.issue_weight(k)
                st["w"] = True
        self.tail()

    def text(self):
        self.body()
        lines, nn = asmlib.pad(self.L)
        hdr = [
            "; Fused pre-LN GQA decode block + ReGLU MLP, one persistent launch (generated by work/gen.py).",
            f"; @launch grid=(256,1,1) block=(256,1,1) lds={LDS_BYTES}",
            '.amdgcn_target "amdgcn-amd-amdhsa--gfx950"', ".text", f".globl {NAME}", ".p2align 8",
            f".type {NAME},@function", f"{NAME}:"]
        ftr = ['.section .rodata,"a"', ".p2align 6", f".amdhsa_kernel {NAME}",
               "  .amdhsa_next_free_vgpr 512", "  .amdhsa_next_free_sgpr 102", "  .amdhsa_accum_offset 256",
               "  .amdhsa_group_segment_fixed_size 0", "  .amdhsa_kernarg_size 96", "  .amdhsa_user_sgpr_count 2",
               "  .amdhsa_user_sgpr_kernarg_segment_ptr 1", "  .amdhsa_system_sgpr_workgroup_id_x 1", ".end_amdhsa_kernel"]
        if self.stamps:
            hdr.insert(1, "; stamps: " + " ".join(self.stamp_names))
        return "\n".join(hdr + lines + ftr) + "\n"


if __name__ == "__main__":
    out = sys.argv[1]
    kw = eval("dict(" + (sys.argv[2] if len(sys.argv) > 2 else "") + ")")
    open(out, "w").write(Gen(**kw).text())
```

```python
import sys, os
sys.path.insert(0, os.path.dirname(os.path.abspath(__file__)))
import asmlib

NAME = "sequential_preLN__gqa_block_cached__glu_gated_reglu__decode_kernel"

WS_RC = 0x800
WS_RL = 0x7000
WS_KY = 0x6800
WS_QB = 0x1000
WS_FL = 0x6000
WS_ST = 0x8000
WS_O1 = 0x10000
WS_A2 = 0x100000
WS_A3 = 0x110000
WS_STAMP = 0x200000
WS_SIZE = 0x300000
L_QP = 0
L_CNT = 256
L_STW = 512
L_OP = 1024
L_S2 = 10240
L_LNS = 10752
L_H = 11264
L_HN = 12288
L_GU = 13312
L_F = 13824
LDS_BYTES = 16384
sG, sJ, sE, sTAG = 28, 29, 30, 31
sK, sV, sWS, sX, sWQ, sWO, sWG, sWU, sWD, sOUT = 32, 36, 40, 44, 48, 52, 56, 60, 64, 68
sBASE, sT, sLO, sHI = 72, 73, 74, 75
sT16, sT2, sSPIN, sT1, sP = 76, 77, 78, 79, 80
sU0, sU1, sU2 = 81, 82, 83
sWQO, sRL = 24, 25
sXC, sLOC = 15, 27
sT0 = 14
sM = 84
sMISS = 86
vL, vT0, vV, vK = 0, 1, 2, 3
vX3, vM, vLs, vST = 4, 5, 6, 7
vQ = 8
vA, vB, vC, vD = 12, 13, 14, 15
vZ = 16
vACC = 48
vAT = 80
vRD = 96
vBS = 112
vE = 120
vRING = 128
LOG2E = 0x3fb8aa3b
SPIN_LIMIT = 200000


def srd(i):
    return f"s[{i}:{i+3}]"


def vr(i, n=1, k="v"):
    return f"{k}{i}" if n == 1 else f"{k}[{i}:{i+n-1}]"


class Gen:
    def __init__(self, W=16, holdq=72, pq=56, holds=72, ps=56, slope=3, stamps=False, R=96, gmap=0, qat=24, W0=16, W2=None, Wat=256,
                 pace=0, pace0=0, pace_from=3, pace_to=31, wat=216, dbg='', wl=0, wo_at=256, loc=0, fl_at=200, fl_chk=240, wqs=(0,0,0,0), ig=8, dyn=0, rl_pub=232, nrole=28, amp=None):
        self.amp = amp
        self.dyn, self.rl_pub, self.nrole = dyn, rl_pub, nrole
        self.ig = ig
        self.wqs = wqs
        self.wl, self.wo_at, self.loc, self.fl_at, self.fl_chk = wl, wo_at, loc, fl_at, fl_chk
        self.dbg = dbg
        self.W0, self.W2, self.Wat, self.wat = W0, (W2 or W), Wat, wat
        self.pace, self.pace0, self.pace_from, self.pace_to = pace, pace0, pace_from, pace_to
        self.gmap = gmap
        self.qat = qat
        self.W, self.holdq, self.pq, self.holds, self.ps, self.slope = W, holdq, pq, holds, ps, slope
        self.stamps = stamps
        self.R = R
        self.L = []
        self.id_w3 = {}
        self.role_known = not dyn
        self.nload = 0
        self.done = 0
        self.nlab = 0
        self.nstamp = 0
        self.stamp_names = []

    def A(self, s):
        self.L.append("  " + s if not s.endswith(":") else s)

    def lab(self, p="L"):
        self.nlab += 1
        return f"{p}_{self.nlab}"

    def load(self, text):
        self.A(text)
        self.nload += 1
        return self.nload

    def wait(self, lid):
        if lid <= self.done:
            return
        n = self.nload - lid
        self.A(f"s_waitcnt vmcnt({min(n, 63)})")
        self.done = lid if n <= 63 else self.nload - 63

    def waitall(self):
        self.A("s_waitcnt vmcnt(0)")
        self.done = self.nload

    def stamp(self, name):
        A = self.A
        if self.amp and name in ("start", self.amp[0]):
            A("s_memrealtime vcc")
            A("s_waitcnt lgkmcnt(0)")
            A(f"v_writelane_b32 v{vST}, vcc_lo, {0 if name == 'start' else 1}")
        if not self.stamps:
            return
        A("s_memrealtime vcc")
        A("s_waitcnt lgkmcnt(0)")
        A(f"v_writelane_b32 v{vST}, vcc_lo, {self.nstamp}")
        self.stamp_names.append(name)
        self.nstamp += 1

    def dpp(self, op, d, s0, s1, ctrl, bank=0xf, row=0xf):
        self.A(f"{op}_dpp v{d}, v{s0}, v{s1} {ctrl} row_mask:{row:#x} bank_mask:{bank:#x}")

    def wave_sum_to_sgpr(self, regs, sdst):
        for c in ("row_ror:8", "row_ror:4", "row_ror:2", "row_ror:1"):
            for r in regs:
                self.dpp("v_add_f32", r, r, r, c)
        for r in regs:
            self.dpp("v_add_f32", r, r, r, "row_bcast:15", row=0xa)
        for r in regs:
            self.dpp("v_add_f32", r, r, r, "row_bcast:31", row=0xc)
        for r, s in zip(regs, sdst):
            self.A(f"v_readlane_b32 s{s}, v{r}, 63")

    def allreduce_25(self, op, x, t):
        self.dpp(op, x, x, x, "row_ror:4")
        self.dpp(op, x, x, x, "row_ror:8")
        for sw in ("v_permlane16_swap_b32", "v_permlane32_swap_b32"):
            self.A(f"v_mov_b32 v{t}, v{x}")
            self.A(f"{sw} v{x}, v{t}")
            self.A(f"{op} v{x}, v{x}, v{t}")

    def tswap(self, which, pairs):
        sw = "v_permlane32_swap_b32" if which == 32 else "v_permlane16_swap_b32"
        for x, y in pairs:
            self.A(f"{sw} v{x}, v{y}")
        for x, y in pairs:
            self.A(f"v_add_f32 v{x}, v{x}, v{y}")

    def rnd(self, d, s):
        self.A(f"v_cvt_pk_bf16_f32 v{d}, 0, v{s}")

    def ln_scalars(self, vmean, vvar, vmb, vrs):
        A = self.A
        self.rnd(vmb, vmean)
        self.rnd(vrs, vvar)
        A(f"v_add_f32 v{vrs}, 0x3727c5ac, v{vrs}")
        self.rnd(vrs, vrs)
        A(f"v_sqrt_f32 v{vrs}, v{vrs}")
        self.rnd(vrs, vrs)
        A(f"v_rcp_f32 v{vrs}, v{vrs}")

    def norm_pair(self, d, lo, hi, vmb, vrs):
        A = self.A
        A(f"v_sub_f32 v{lo}, v{lo}, v{vmb}")
        A(f"v_sub_f32 v{hi}, v{hi}, v{vmb}")
        self.rnd(lo, lo)
        self.rnd(hi, hi)
        A(f"v_mul_f32 v{lo}, v{lo}, v{vrs}")
        A(f"v_mul_f32 v{hi}, v{hi}, v{vrs}")
        A(f"v_cvt_pk_bf16_f32 v{d}, v{lo}, v{hi}")

    def perm_pairs(self, dst, r0, r1):
        for u in range(4):
            self.A(f"v_perm_b32 v{dst+2*u}, v{r1+u}, v{r0+u}, s{sLO}")
            self.A(f"v_perm_b32 v{dst+2*u+1}, v{r1+u}, v{r0+u}, s{sHI}")

    def poll_issue(self, loads):
        ids = []
        for t in loads:
            ids.append(self.load(t))
        return ids

    def poll_finish(self, loads, check, counted_id=None):
        A = self.A
        n = len(loads)
        if counted_id is None:
            self.waitall()
        else:
            self.wait(counted_id)
        ldone, lretry = self.lab("Lpd"), self.lab("Lpr")

        def orall():
            if n == 1:
                A(f"s_mov_b64 s[{sM}:{sM+1}], s[{sMISS}:{sMISS+1}]")
            else:
                A(f"s_or_b64 s[{sM}:{sM+1}], s[{sMISS}:{sMISS+1}], s[{sMISS+2}:{sMISS+3}]")
                for k in range(2, n):
                    A(f"s_or_b64 s[{sM}:{sM+1}], s[{sM}:{sM+1}], s[{sMISS+2*k}:{sMISS+2*k+1}]")
            A(f"s_cmp_eq_u64 s[{sM}:{sM+1}], 0")
        for k in range(n):
            check(k)
        orall()
        A(f"s_cbranch_scc1 {ldone}")
        A(f"s_mov_b32 s{sSPIN}, {SPIN_LIMIT}")
        A(f"{lretry}:")
        for k in range(n):
            sk = self.lab("Lps")
            A(f"s_cmp_eq_u64 s[{sMISS+2*k}:{sMISS+2*k+1}], 0")
            A(f"s_cbranch_scc1 {sk}")
            A(f"s_mov_b64 exec, s[{sMISS+2*k}:{sMISS+2*k+1}]")
            for t in (loads[k] if isinstance(loads[k], (list, tuple)) else [loads[k]]):
                A(t)
            A(f"{sk}:")
        A("s_mov_b64 exec, -1")
        A("s_waitcnt vmcnt(0)")
        for k in range(n):
            sk = self.lab("Lpc")
            A(f"s_cmp_eq_u64 s[{sMISS+2*k}:{sMISS+2*k+1}], 0")
            A(f"s_cbranch_scc1 {sk}")
            check(k)
            A(f"{sk}:")
        orall()
        A(f"s_cbranch_scc1 {ldone}")
        A(f"s_sub_u32 s{sSPIN}, s{sSPIN}, 1")
        A(f"s_cmp_lg_u32 s{sSPIN}, 0")
        A(f"s_cbranch_scc1 {lretry}")
        A(f"{ldone}:")

    def check_sentinel(self, base):
        def chk(k):
            r = base + 4 * k
            t = vE + (k & 1)
            self.A(f"v_max3_u32 v{t}, v{r}, v{r+1}, v{r+2}")
            self.A(f"v_max_u32 v{t}, v{t}, v{r+3}")
            self.A(f"v_cmp_eq_u32 s[{sMISS+2*k}:{sMISS+2*k+1}], -1, v{t}")
        return chk

    def slot(self, i):
        s = i % self.R
        if s < 32:
            return ("a", s * 4)
        if s < 64:
            return ("v", vRING + (s - 32) * 4)
        return ("a", 128 + (s - 64) * 4)

    def issue_stream(self, i):
        t, r = self.slot(i)
        isK = i < 128
        a = i % 128
        off = (a >> 4) * (32 * 65536) + (a & 15) * 4096
        self.A(f"s_add_u32 s{sT}, s{sBASE}, {off}")
        return self.load(f"buffer_load_dwordx4 {vr(r,4,t)}, v{vK if isK else vV}, {srd(sK if isK else sV)}, s{sT} offen{'' if ('K' if isK else 'V') in self.dbg else ' nt'}")

    def k_dpp(self, a):
        d = vAT + (a & 3) * 4
        z = vZ + 8 * (a >> 5) + (a & 7)
        t = (a >> 3) & 3
        first = True
        for dp in (1, 2, 3):
            p = (t + dp) & 3
            ror = (4 * (t - p)) % 16
            self.dpp("v_add_f32", z, d + p, (d + t) if first else z, f"row_ror:{ror}", bank=1 << t)
            first = False
        if (a & 31) == 31:
            G = a >> 5
            zs = [vZ + 8 * G + i for i in range(8)]
            for z in zs:
                self.rnd(z, z)
            for z in zs:
                self.A(f"v_mul_f32 v{z}, 0x3db504f3, v{z}")
            for z in zs:
                self.rnd(z, z)
            if G == 0:
                self.A(f"v_max_f32 v{vM}, v{zs[0]}, v{zs[1]}")
                rest = zs[2:]
            else:
                rest = zs
            for i in range(0, len(rest), 2):
                self.A(f"v_max3_f32 v{vM}, v{vM}, v{rest[i]}, v{rest[i+1]}")

    def consume_k(self, a):
        t, r = self.slot(a)
        d = vAT + (a & 3) * 4
        self.A(f"v_mfma_f32_16x16x32_bf16 {vr(d,4)}, {vr(r,4,t)}, {vr(vQ,4)}, 0")
        if a >= 3:
            self.k_dpp(a - 3)
        if a == 127:
            for b in (125, 126, 127):
                self.k_dpp(b)

    def consume_v_group(self, gam):
        A = self.A
        G, t0 = gam >> 2, gam & 3
        pb = vZ + 8 * G
        if t0 == 0:
            B = pb
        else:
            B = vBS + (gam & 1) * 4
            for u in range(4):
                A(f"v_mov_b32_dpp v{B+u}, v{pb+u} row_ror:{16-4*t0} row_mask:0xf bank_mask:0xf")
        slots = [self.slot(128 + gam * 8 + tau) for tau in range(8)]
        for uu in range(4):
            src = []
            for tau in range(8):
                t, r = slots[tau]
                if t == "a":
                    tmp = vRD + (uu & 1) * 8 + tau
                    A(f"v_accvgpr_read_b32 v{tmp}, a{r+uu}")
                    src.append(tmp)
                else:
                    src.append(r + uu)
            alo = vAT + (uu & 1) * 8
            ahi = alo + 4
            for u in range(4):
                A(f"v_perm_b32 v{alo+u}, v{src[2*u+1]}, v{src[2*u]}, s{sLO}")
            for u in range(4):
                A(f"v_perm_b32 v{ahi+u}, v{src[2*u+1]}, v{src[2*u]}, s{sHI}")
            for e, a_ in ((2 * uu, alo), (2 * uu + 1, ahi)):
                acc = vr(vACC + 4 * e, 4)
                A(f"v_mfma_f32_16x16x32_bf16 {acc}, {vr(a_,4)}, {vr(B,4)}, {'0' if gam == 0 else acc}")

    def prologue(self):
        A = self.A
        A("s_cmp_ge_u32 s2, 256")
        A("s_cbranch_scc1 L_end")
        A("s_load_dwordx16 s[4:19], s[0:1], 0")
        A("s_load_dwordx8 s[20:27], s[0:1], 64")
        if self.pace:
            A("s_memrealtime vcc")
        A(f"v_lshrrev_b32 v{vT0}, 6, v0")
        A(f"v_and_b32 v{vL}, 63, v0")
        A(f"v_readfirstlane_b32 s3, v{vT0}")
        if self.gmap == 0:
            A(f"s_and_b32 s{sG}, s2, 7")
            A(f"s_lshr_b32 s{sJ}, s2, 3")
        elif self.gmap >= 2:
            A(f"s_add_u32 s{sG}, s2, {self.gmap - 1}")
            A(f"s_and_b32 s{sG}, s{sG}, 7")
            A(f"s_lshr_b32 s{sJ}, s2, 3")
        else:
            A(f"s_lshr_b32 s{sG}, s2, 5")
            A(f"s_and_b32 s{sJ}, s2, 31")
        A(f"v_lshlrev_b32 v{vV}, 4, v{vL}")
        A(f"v_bfe_u32 v{vK}, v{vL}, 2, 2")
        A(f"v_lshlrev_b32 v{vK}, 8, v{vK}")
        A(f"v_lshrrev_b32 v{vT0}, 4, v{vL}")
        A(f"v_lshl_add_u32 v{vK}, v{vT0}, 6, v{vK}")
        A(f"v_and_b32 v{vT0}, 3, v{vL}")
        A(f"v_lshl_add_u32 v{vK}, v{vT0}, 4, v{vK}")
        A(f"v_lshrrev_b32 v{vB}, 1, v{vL}")
        A(f"v_lshlrev_b32 v{vA}, {13 if 's' in self.dbg else 15 if 't' in self.dbg else 14}, v{vB}")
        A(f"v_and_b32 v{vT0}, 1, v{vL}")
        A(f"v_lshl_add_u32 v{vA}, v{vT0}, 4, v{vA}")
        A(f"v_lshlrev_b32 v{vB}, 2, v{vB}")
        A(f"v_and_b32 v{vC}, 31, v{vL}")
        A(f"v_lshlrev_b32 v{vC}, 3, v{vC}")
        A(f"v_lshrrev_b32 v{vT0}, 5, v{vL}")
        A(f"v_lshl_add_u32 v{vC}, v{vT0}, 2, v{vC}")
        for i in range(4):
            A(f"v_mov_b32 v{vQ+i}, -1")
        if self.stamps:
            A(f"v_mov_b32 v{vST}, 0")
        A(f"s_mov_b32 s{sLO}, 0x05040100")
        A(f"s_mov_b32 s{sHI}, 0x07060302")
        A(f"s_lshl_b32 s{sBASE}, s{sJ}, 16")
        A(f"s_lshl_b32 s{sT}, s3, 10")
        A(f"s_add_u32 s{sBASE}, s{sBASE}, s{sT}")
        A(f"s_lshl_b32 s{sT1}, s{sG}, 24")
        A(f"s_lshl_b32 s{sU0}, s{sG}, 10")
        A(f"s_lshl_b32 s{sU1}, s{sJ}, 5")
        A(f"s_add_u32 s{sU0}, s{sU0}, s{sU1}")
        A(f"s_lshl_b32 s{sU1}, s3, 20")
        A(f"s_add_u32 s{sU0}, s{sU0}, s{sU1}")
        A(f"s_lshl_b32 s{sU1}, s3, 8")
        A("s_waitcnt lgkmcnt(0)")
        A(f"s_load_dword s{sE}, s[26:27], 0")
        if self.pace:
            A(f"s_mov_b32 s{sT0}, vcc_lo")

        def mk(s, p, n):
            A(f"s_mov_b32 s{s}, s{p}")
            A(f"s_mov_b32 s{s+1}, s{p+1}")
            A(f"s_mov_b32 s{s+2}, {n}")
            A(f"s_mov_b32 s{s+3}, 0x20000")
        mk(sX, 4, 0 if 'x' in self.dbg else 1024)
        if 'r' in self.dbg:
            A(f"s_add_u32 s{sU0}, s{sU0}, 128")
        mk(sWQ, 10, 0 if 'q' in self.dbg else 512 * 8192)
        zx = vZ
        self.id_x = self.load(f"buffer_load_dwordx4 {vr(zx,4)}, v{vV}, {srd(sX)}, 0 offen")
        self.load(f"buffer_load_dword v{zx+4}, v{vB}, {srd(sX)}, s{sU1} offen")
        self.id_xp = self.load(f"buffer_load_dword v{zx+5}, v{vB}, {srd(sX)}, s{sU1} offen offset:128")
        A(f"s_mov_b32 s{sWQO}, s{sU0}")
        for i in range(4):
            if self.wqs[i] == 0:
                self.issue_wq(i)
        A(f"s_add_u32 s{sK}, s6, s{sT1}")
        A(f"s_addc_u32 s{sK+1}, s7, 0")
        A(f"s_mov_b32 s{sK+2}, {16<<20}")
        A(f"s_mov_b32 s{sK+3}, 0x20000")
        A(f"s_add_u32 s{sV}, s8, s{sT1}")
        A(f"s_addc_u32 s{sV+1}, s9, 0")
        A(f"s_mov_b32 s{sV+2}, {16<<20}")
        A(f"s_mov_b32 s{sV+3}, 0x20000")
        mk(sWS, 26, WS_SIZE)
        self.mk = mk

    def issue_wq(self, i):
        off = (i & 1) * 8192 + (i >> 1) * 64 * 8192
        if 's' in self.dbg:
            off = i * 32 * 8192
        if 't' in self.dbg:
            off = i * 8192
        self.A(f"s_add_u32 s{sT}, s{sWQO}, {off}")
        self.id_wq = self.load(f"buffer_load_dwordx4 {vr(vZ+8+4*i,4)}, v{vA}, {srd(sWQ)}, s{sT} offen{' nt' if 'N' in self.dbg else ''}")

    def prologue2(self):
        A = self.A
        mk = self.mk
        self.load(f"buffer_load_dword v{vX3}, v{vC}, {srd(sX)}, s{sU1} offen")
        A(f"s_lshl_b32 s{sU0}, s{sG}, 16")
        A(f"s_lshl_b32 s{sU1}, s{sJ}, 11")
        A(f"s_add_u32 s{sU0}, s{sU0}, s{sU1}")
        A(f"s_add_u32 s{sU0}, s{sU0}, {WS_O1}")
        A(f"s_lshl_b32 s{sU1}, s2, 11")
        A(f"s_add_u32 s{sU1}, s{sU1}, {WS_A3 - 2048}")
        A("s_cmp_lt_u32 s3, 2")
        A(f"s_cselect_b32 s{sU0}, s{sU0}, s{sU1}")
        A(f"s_lshl_b32 s{sU1}, s3, 10")
        A(f"s_add_u32 s{sU0}, s{sU0}, s{sU1}")
        if 'z' not in self.dbg:
            A(f"buffer_store_dwordx4 {vr(vQ,4)}, v{vV}, {srd(sWS)}, s{sU0} offen sc1")
        A(f"s_lshl_b32 s{sP}, s{sG}, 12")
        A(f"s_lshr_b32 s{sU1}, s{sJ}, 4")
        A(f"s_lshl_b32 s{sU1}, s{sU1}, 11")
        A(f"s_add_u32 s{sP}, s{sP}, s{sU1}")
        A(f"s_and_b32 s{sU1}, s{sJ}, 15")
        A(f"s_lshl_b32 s{sU1}, s{sU1}, 7")
        A(f"s_add_u32 s{sP}, s{sP}, s{sU1}")
        A(f"s_add_u32 s{sP}, s{sP}, {WS_A2}")
        A("s_mov_b64 exec, 0xff")
        if 'z' not in self.dbg:
            A(f"buffer_store_dwordx4 {vr(vQ,4)}, v{vV}, {srd(sWS)}, s{sP} offen sc1")
        A("s_mov_b64 exec, -1")
        mk(sWO, 12, 0 if 'o' in self.dbg else 4096 * 1024)
        mk(sWG, 16, 0)
        mk(sWU, 18, 0)
        mk(sWD, 20, 0)
        if self.dyn == 2:
            A("s_bfe_u32 s4, s2, 0x20003")
            A(f"s_and_b32 s{sRL}, s2, 7")
            A(f"s_lshl_b32 s{sRL}, s{sRL}, 3")
            A(f"s_lshr_b32 s{sU1}, s2, 5")
            A(f"s_add_u32 s{sRL}, s{sRL}, s{sU1}")
        elif self.dyn:
            A("s_bfe_u32 s4, s2, 0x20003")
            A("s_or_b32 s5, s4, s3")
            A(f"s_and_b32 s{sRL}, s2, 7")
            A(f"s_lshl_b32 s{sRL}, s{sRL}, 7")
            A(f"s_lshr_b32 s{sU1}, s2, 5")
            A(f"s_lshl_b32 s{sU1}, s{sU1}, 2")
            A(f"s_add_u32 s{sRL}, s{sRL}, s{sU1}")
            A(f"s_add_u32 s{sRL}, s{sRL}, {WS_RL}")
            skip = self.lab("Lz")
            A(f"s_or_b32 s{sU1}, s2, s3")
            A(f"s_cmp_lg_u32 s{sU1}, 0")
            A(f"s_cbranch_scc1 {skip}")
            A("s_mov_b64 exec, 1")
            A(f"buffer_store_dword v{vV}, v{vV}, {srd(sWS)}, 0 offen offset:{WS_RC} sc1")
            A("s_mov_b64 exec, -1")
            A(f"{skip}:")
        else:
            A("s_lshr_b32 s5, s2, 5")
            A("s_lshl_b32 s5, s5, 3")
            A("s_and_b32 s4, s2, 7")
            A("s_add_u32 s4, s4, s5")
            A("s_lshl_b32 s4, s4, 2")
            A("s_bfe_u32 s5, s2, 0x20003")
            A("s_add_u32 s4, s4, s5")
            self.role_set()
        mk(sOUT, 22, 1024)

    def role_set(self):
        A = self.A
        A("s_cmp_lt_u32 s4, 112")
        A("s_cselect_b32 s5, 1, 0")
        if 'g' not in self.dbg:
            A(f"s_cselect_b32 s{sWG+2}, {512*3584}, 0")
            A(f"s_cselect_b32 s{sWU+2}, {512*3584}, 0")
        if 'd' not in self.dbg:
            A(f"s_cselect_b32 s{sWD+2}, {1792*1024}, 0")

    def role_ticket(self):
        A = self.A
        skip = self.lab("Lt")
        A("s_cmp_lg_u32 s5, 0")
        A(f"s_cbranch_scc1 {skip}")
        A(f"v_mov_b32 v{vE+4}, 1")
        A("s_mov_b64 exec, 1")
        A(f"buffer_atomic_add v{vE+4}, v{vV}, {srd(sWS)}, 0 offen offset:{WS_RC} sc0")
        A("s_mov_b64 exec, -1")
        A(f"{skip}:")
        self.id_tk = self.nload + 1

    def role_publish(self):
        A = self.A
        assert self.id_tk <= self.nload
        self.wait(self.id_tk)
        skip = self.lab("Lt")
        A("s_cmp_lg_u32 s5, 0")
        A(f"s_cbranch_scc1 {skip}")
        A(f"v_min_u32 v{vE+4}, 255, v{vE+4}")
        A(f"v_lshlrev_b32 v{vE+4}, 16, v{vE+4}")
        A(f"v_or_b32 v{vE+4}, s{sT16}, v{vE+4}")
        A("s_mov_b64 exec, 1")
        A(f"buffer_store_dword v{vE+4}, v{vV}, {srd(sWS)}, s{sRL} offen sc1")
        A("s_mov_b64 exec, -1")
        A(f"{skip}:")

    def role_poll_issue(self):
        self.rl = [f"buffer_load_dword v{vE+5}, off, {srd(sWS)}, s{sRL} sc1"]
        self.id_rl = self.load(self.rl[0])

    def role_poll_finish(self):
        A = self.A

        def chk(k):
            A(f"v_and_b32 v{vE+6}, 0xffff, v{vE+5}")
            A(f"v_cmp_ne_u32 s[{sMISS}:{sMISS+1}], s{sT16}, v{vE+6}")
        self.poll_finish(self.rl, chk, self.id_rl)
        A(f"v_readfirstlane_b32 s5, v{vE+5}")
        A("s_lshr_b32 s5, s5, 16")
        A("s_lshl_b32 s5, s5, 2")
        A("s_add_u32 s4, s4, s5")
        self.role_set()
        self.role_addr()

    def qphase(self):
        A = self.A
        zx = vZ
        t = vACC
        self.wait(self.id_xp)
        for u in range(4):
            A(f"v_lshlrev_b32 v{t+2*u}, 16, v{zx+u}")
            A(f"v_and_b32 v{t+2*u+1}, 0xffff0000, v{zx+u}")
        s = t + 8
        A(f"v_add_f32 v{s}, v{t}, v{t+1}")
        for i in range(2, 8):
            A(f"v_add_f32 v{s}, v{s}, v{t+i}")
        self.wave_sum_to_sgpr([s], [sU0])
        mean, var, mb, rs = t + 9, t + 10, t + 11, t + 12
        A(f"v_mov_b32 v{mean}, 0x3b000000")
        A(f"v_mul_f32 v{mean}, s{sU0}, v{mean}")
        for i in range(8):
            A(f"v_sub_f32 v{t+i}, v{t+i}, v{mean}")
        A(f"v_mul_f32 v{s}, v{t}, v{t}")
        for i in range(1, 8):
            A(f"v_fmac_f32 v{s}, v{t+i}, v{t+i}")
        self.wave_sum_to_sgpr([s], [sU0])
        A(f"v_mov_b32 v{var}, 0x3b000000")
        A(f"v_mul_f32 v{var}, s{sU0}, v{var}")
        self.ln_scalars(mean, var, mb, rs)
        xn = t + 14
        for i in range(2):
            A(f"v_lshlrev_b32 v{t+2*i}, 16, v{zx+4+i}")
            A(f"v_and_b32 v{t+2*i+1}, 0xffff0000, v{zx+4+i}")
            self.norm_pair(xn + i, t + 2 * i, t + 2 * i + 1, mb, rs)
        self.wait(self.id_wq)
        w = zx + 8
        p0, p1 = vAT, vAT + 8
        self.perm_pairs(p0, w, w + 4)
        self.perm_pairs(p1, w + 8, w + 12)
        acc = t + 16
        for c in range(8):
            A(f"v_dot2_f32_bf16 v{acc+c}, v{p0+c}, v{xn}, 0")
        for c in range(8):
            A(f"v_dot2_f32_bf16 v{acc+c}, v{p1+c}, v{xn+1}, v{acc+c}")
        self.tswap(32, [(acc + c, acc + c + 4) for c in range(4)])
        self.tswap(16, [(acc + c, acc + c + 2) for c in range(2)])
        for c in ("row_ror:4", "row_ror:8", "quad_perm:[2,3,0,1]"):
            for r in (acc, acc + 1):
                self.dpp("v_add_f32", r, r, r, c)
        ad = t
        A(f"v_and_b32 v{ad}, 1, v{vL}")
        A(f"v_lshlrev_b32 v{ad}, 5, v{ad}")
        A(f"v_lshrrev_b32 v{t+1}, 4, v{vL}")
        A(f"v_lshl_add_u32 v{ad}, v{t+1}, 3, v{ad}")
        A(f"s_lshl_b32 s{sU0}, s3, 6")
        A(f"v_add_u32 v{ad}, s{sU0}, v{ad}")
        A(f"v_mov_b32 v{t+2}, 0")
        A(f"s_mov_b32 exec_lo, 0x00030003")
        A(f"s_mov_b32 exec_hi, 0x00030003")
        A(f"ds_write_b64 v{ad}, {vr(acc,2)} offset:{L_QP}")
        A(f"ds_write_b32 v{t+2}, v{t+2} offset:{L_CNT}")
        A("s_mov_b64 exec, -1")
        A("s_waitcnt lgkmcnt(0)")
        A(f"s_add_u32 s{sE}, s{sE}, 1")
        A(f"s_and_b32 s{sTAG}, s{sE}, 0xff")
        A(f"s_mul_i32 s{sTAG}, s{sTAG}, 0x01010101")
        A(f"s_xor_b32 s{sTAG}, s{sTAG}, 0x33aa5500")
        A(f"s_and_b32 s{sT16}, s{sTAG}, 0xffff")
        A(f"s_mul_i32 s{sT2}, s{sT16}, 0x10001")
        A(f"s_getreg_b32 s{sXC}, hwreg(HW_REG_XCC_ID)")
        A(f"s_lshl_b32 s{sXC}, s{sXC}, 16")
        A(f"s_or_b32 s{sXC}, s{sXC}, s{sT16}")
        A("s_barrier")
        skip = self.lab("Lq")
        A("s_cmp_lg_u32 s3, 0")
        A(f"s_cbranch_scc1 {skip}")
        A("s_mov_b64 exec, 0xf")
        for wv in range(4):
            A(f"ds_read_b128 {vr(t+4*wv,4)}, v{vV} offset:{L_QP+64*wv}")
        A(f"s_lshl_b32 s{sU0}, s{sG}, 11")
        A(f"s_lshl_b32 s{sU1}, s{sJ}, 6")
        A(f"s_add_u32 s{sU0}, s{sU0}, s{sU1}")
        A(f"s_add_u32 s{sU0}, s{sU0}, {WS_QB}")
        A("s_waitcnt lgkmcnt(0)")
        for i in range(4):
            A(f"v_add_f32 v{t+i}, v{t+i}, v{t+4+i}")
            A(f"v_add_f32 v{t+8+i}, v{t+8+i}, v{t+12+i}")
        for i in range(4):
            A(f"v_add_f32 v{t+i}, v{t+i}, v{t+8+i}")
        for i in range(4):
            self.rnd(t + i, t + i)
        for i in range(4):
            A(f"v_or_b32 v{t+i}, s{sT16}, v{t+i}")
        A(f"buffer_store_dwordx4 {vr(t,4)}, v{vV}, {srd(sWS)}, s{sU0} offen sc1")
        A("s_mov_b64 exec, -1")
        A(f"{skip}:")
        self.stamp("qpub")

    def qpoll_issue(self):
        A = self.A
        ad = vE + 2
        A(f"v_and_b32 v{ad}, 3, v{vL}")
        A(f"v_lshlrev_b32 v{ad}, 9, v{ad}")
        A(f"v_lshrrev_b32 v{vT0}, 2, v{vL}")
        A(f"v_lshl_add_u32 v{ad}, v{vT0}, 5, v{ad}")
        A(f"s_lshl_b32 s{sU2}, s{sG}, 11")
        A(f"s_add_u32 s{sU2}, s{sU2}, {WS_QB}")
        b = vACC
        self.q_loads = [[f"buffer_load_dwordx4 {vr(b,4)}, v{ad}, {srd(sWS)}, s{sU2} offen sc1",
                         f"buffer_load_dwordx4 {vr(b+4,4)}, v{ad}, {srd(sWS)}, s{sU2} offen offset:16 sc1"]]
        self.load(self.q_loads[0][0])
        self.id_q = self.load(self.q_loads[0][1])

    def qpoll_finish(self):
        A = self.A
        b = vACC
        t = vACC + 8

        def chk(k):
            for u in range(4):
                A(f"v_perm_b32 v{t+u}, v{b+2*u+1}, v{b+2*u}, s{sLO}")
            for u in range(4):
                A(f"v_xor_b32 v{t+u}, s{sT2}, v{t+u}")
            A(f"v_or3_b32 v{t}, v{t}, v{t+1}, v{t+2}")
            A(f"v_or_b32 v{t}, v{t}, v{t+3}")
            A(f"v_cmp_ne_u32 s[{sMISS}:{sMISS+1}], 0, v{t}")
        self.stamp("qchk")
        self.poll_finish(self.q_loads, chk, self.id_q)
        for u in range(4):
            A(f"v_perm_b32 v{vQ+u}, v{b+2*u+1}, v{b+2*u}, s{sHI}")
        self.stamp("qok")

    def expd(self, d, a, b):
        self.A(f"v_sub_f32 v{d}, v{a}, v{b}")
        self.A(f"v_mul_f32 v{d}, {LOG2E:#x}, v{d}")
        self.A(f"v_exp_f32 v{d}, v{d}")

    def stats_publish(self):
        A = self.A
        self.stamp("kdone")
        for z in range(32):
            A(f"v_sub_f32 v{vZ+z}, v{vZ+z}, v{vM}")
        for z in range(32):
            A(f"v_mul_f32 v{vZ+z}, {LOG2E:#x}, v{vZ+z}")
        for z in range(32):
            A(f"v_exp_f32 v{vZ+z}, v{vZ+z}")
        t = vAT
        for i in range(4):
            A(f"v_add_f32 v{t+i}, v{vZ+i}, v{vZ+4+i}")
        for z in range(8, 32):
            A(f"v_add_f32 v{t+(z&3)}, v{t+(z&3)}, v{vZ+z}")
        A(f"v_add_f32 v{t}, v{t}, v{t+1}")
        A(f"v_add_f32 v{t+2}, v{t+2}, v{t+3}")
        A(f"v_add_f32 v{vLs}, v{t}, v{t+2}")
        mw, lw, tt = t + 4, t + 5, t + 6
        A(f"v_mov_b32 v{mw}, v{vM}")
        self.allreduce_25("v_max_f32", mw, tt)
        self.expd(lw, vM, mw)
        A(f"v_mul_f32 v{lw}, v{lw}, v{vLs}")
        self.allreduce_25("v_add_f32", lw, tt)
        ad = t + 7
        A(f"v_lshlrev_b32 v{ad}, 3, v{vL}")
        A(f"s_lshl_b32 s{sU0}, s3, 5")
        A(f"v_add_u32 v{tt}, s{sU0}, v{ad}")
        A(f"v_mov_b32 v{t+8}, 0")
        A(f"v_mov_b32 v{t+9}, 1")
        A("s_mov_b64 exec, 0xf")
        A(f"ds_write_b64 v{tt}, {vr(mw,2)} offset:{L_STW}")
        A("s_mov_b64 exec, 1")
        A(f"ds_add_rtn_u32 v{t+10}, v{t+8}, v{t+9} offset:{L_CNT}")
        A("s_mov_b64 exec, -1")
        A(f"v_and_b32 v{ad}, 0x78, v{ad}")
        A("s_waitcnt lgkmcnt(0)")
        A(f"v_readfirstlane_b32 s{sU0}, v{t+10}")
        skip = self.lab("Ls")
        A(f"s_cmp_lg_u32 s{sU0}, 3")
        A(f"s_cbranch_scc1 {skip}")
        m, l = t + 8, t + 9
        A(f"ds_read_b64 {vr(m,2)}, v{ad} offset:{L_STW}")
        if self.dyn == 2:
            A("s_memrealtime vcc")
        A(f"s_lshl_b32 s{sU0}, s{sG}, 11")
        A(f"s_lshl_b32 s{sU1}, s{sJ}, 6")
        A(f"s_add_u32 s{sU0}, s{sU0}, s{sU1}")
        A(f"s_add_u32 s{sU0}, s{sU0}, {WS_ST}")
        A(f"s_lshl_b32 s{sU1}, s2, 2")
        A(f"s_add_u32 s{sU1}, s{sU1}, {WS_FL}")
        A("s_waitcnt lgkmcnt(0)")
        o = t + 12
        A(f"v_mov_b32 v{o}, v{m}")
        self.dpp("v_max_f32", o, o, o, "row_ror:4")
        self.dpp("v_max_f32", o, o, o, "row_ror:8")
        self.expd(tt, m, o)
        A(f"v_mul_f32 v{l}, v{l}, v{tt}")
        self.dpp("v_add_f32", l, l, l, "row_ror:4")
        self.dpp("v_add_f32", l, l, l, "row_ror:8")
        A(f"v_or_b32 v{o}, s{sT16}, v{o}")
        A(f"v_and_b32 v{o+1}, 0xffff0000, v{l}")
        A(f"v_or_b32 v{o+1}, s{sT16}, v{o+1}")
        A(f"v_lshlrev_b32 v{o+2}, 16, v{l}")
        A(f"v_or_b32 v{o+2}, s{sT16}, v{o+2}")
        A(f"v_mov_b32 v{o+3}, s{sXC}")
        A(f"v_mov_b32 v{tt}, s{sTAG}")
        A("s_mov_b64 exec, 0xf")
        A(f"buffer_store_dwordx4 {vr(o,4)}, v{vV}, {srd(sWS)}, s{sU0} offen sc1")
        A("s_mov_b64 exec, 1")
        A(f"buffer_store_dword v{tt}, v{vV}, {srd(sWS)}, s{sU1} offen sc1")
        if self.dyn == 2:
            assert tt % 2 == 0
            A(f"v_mov_b32 v{tt+1}, vcc_lo")
            A(f"s_lshl_b32 s{sU1}, s{sRL}, 3")
            A(f"s_add_u32 s{sU1}, s{sU1}, {WS_KY}")
            A("s_cmp_lg_u32 s4, 0")
            A(f"s_cbranch_scc1 {skip}x")
            A(f"buffer_store_dwordx2 {vr(tt,2)}, v{vV}, {srd(sWS)}, s{sU1} offen sc1")
            A(f"{skip}x:")
        A("s_mov_b64 exec, -1")
        A(f"{skip}:")
        self.stamp("spub")

    def spoll_issue(self):
        A = self.A
        A(f"s_lshl_b32 s{sU2}, s{sG}, 11")
        A(f"s_add_u32 s{sU2}, s{sU2}, {WS_ST}")
        b = vACC
        self.s_loads = [[f"buffer_load_dwordx4 {vr(b,4)}, v{vV}, {srd(sWS)}, s{sU2} offen sc1",
                         f"buffer_load_dwordx4 {vr(b+4,4)}, v{vV}, {srd(sWS)}, s{sU2} offen offset:1024 sc1"]]
        self.load(self.s_loads[0][0])
        self.id_s = self.load(self.s_loads[0][1])

    def spoll_finish(self):
        A = self.A
        b = vACC
        t = vACC + 8

        def chk(k):
            A(f"v_perm_b32 v{t}, v{b+1}, v{b}, s{sLO}")
            A(f"v_perm_b32 v{t+1}, v{b+5}, v{b+4}, s{sLO}")
            A(f"v_perm_b32 v{t+2}, v{b+6}, v{b+2}, s{sLO}")
            A(f"v_perm_b32 v{t+3}, v{b+7}, v{b+3}, s{sLO}")
            for u in range(4):
                A(f"v_xor_b32 v{t+u}, s{sT2}, v{t+u}")
            A(f"v_or3_b32 v{t}, v{t}, v{t+1}, v{t+2}")
            A(f"v_or_b32 v{t}, v{t}, v{t+3}")
            A(f"v_cmp_ne_u32 s[{sMISS}:{sMISS+1}], 0, v{t}")
        self.stamp("schk")
        self.poll_finish(self.s_loads, chk, self.id_s)
        A(f"v_xor_b32 v{t}, s{sXC}, v{b+3}")
        A(f"v_xor_b32 v{t+1}, s{sXC}, v{b+7}")
        A(f"v_or_b32 v{t}, v{t}, v{t+1}")
        A(f"v_cmp_ne_u32 vcc, 0, v{t}")
        A("s_cmp_eq_u64 vcc, 0")
        A(f"s_cselect_b32 s{sLOC}, 1, 0")
        if 'P' in self.dbg:
            self.delay(3000, f"s{sLOC}")
        ma, mb, la, lb, M, tt, f = t, t + 1, t + 2, t + 3, t + 4, t + 5, t + 6
        A(f"v_and_b32 v{ma}, 0xffff0000, v{b}")
        A(f"v_and_b32 v{mb}, 0xffff0000, v{b+4}")
        A(f"v_perm_b32 v{la}, v{b+1}, v{b+2}, s{sHI}")
        A(f"v_perm_b32 v{lb}, v{b+5}, v{b+6}, s{sHI}")
        A(f"v_max_f32 v{M}, v{ma}, v{mb}")
        self.allreduce_25("v_max_f32", M, tt)
        self.expd(ma, ma, M)
        self.expd(mb, mb, M)
        A(f"v_mul_f32 v{la}, v{la}, v{ma}")
        A(f"v_fmac_f32 v{la}, v{lb}, v{mb}")
        self.allreduce_25("v_add_f32", la, tt)
        A(f"v_rcp_f32 v{lb}, v{la}")
        self.expd(f, vM, M)
        A(f"v_fma_f32 v{tt}, -v{la}, v{lb}, 1.0")
        A(f"v_fmac_f32 v{lb}, v{tt}, v{lb}")
        A(f"v_mul_f32 v{f}, v{f}, v{lb}")
        for z in range(32):
            A(f"v_mul_f32 v{vZ+z}, v{vZ+z}, v{f}")
        for G in range(4):
            for u in range(4):
                A(f"v_cvt_pk_bf16_f32 v{vZ+8*G+u}, v{vZ+8*G+2*u}, v{vZ+8*G+2*u+1}")
        self.stamp("sok")

    def weights_prep_addr(self):
        A = self.A
        A(f"v_bfe_u32 v{vA}, v{vL}, 3, 1")
        A(f"v_lshlrev_b32 v{vA}, 15, v{vA}")
        A(f"v_and_b32 v{vT0}, 7, v{vL}")
        A(f"v_lshl_add_u32 v{vA}, v{vT0}, 10, v{vA}")
        A(f"v_lshrrev_b32 v{vT0}, 4, v{vL}")
        A(f"v_lshl_add_u32 v{vA}, v{vT0}, 4, v{vA}")
        A(f"v_lshrrev_b32 v{vB}, 1, v{vL}")
        A(f"v_mul_u32_u24 v{vB}, {4*3584}, v{vB}")
        A(f"v_and_b32 v{vC}, 1, v{vL}")
        A(f"v_lshl_add_u32 v{vB}, v{vC}, 4, v{vB}")
        A(f"v_lshlrev_b32 v{vC}, 12, v{vT0}")
        A(f"v_and_b32 v{vT0}, 15, v{vL}")
        A(f"v_lshl_add_u32 v{vC}, v{vT0}, 4, v{vC}")
        A(f"s_lshl_b32 s6, s{sG}, 19")
        A(f"s_lshr_b32 s7, s{sJ}, 4")
        A("s_lshl_b32 s7, s7, 18")
        A("s_add_u32 s6, s6, s7")
        A("s_lshl_b32 s7, s3, 16")
        A("s_add_u32 s6, s6, s7")
        A(f"s_and_b32 s7, s{sJ}, 15")
        A("s_lshl_b32 s7, s7, 6")
        A("s_add_u32 s6, s6, s7")
        if not self.dyn:
            self.role_addr()

    def role_addr(self):
        A = self.A
        A(f"s_mul_i32 s7, s3, {128*3584}")
        A("s_lshl_b32 s8, s4, 5")
        A("s_add_u32 s7, s7, s8")
        if 'l' in self.dbg:
            A(f"v_mov_b32 v{vB}, v{vV}")
            A("s_lshl_b32 s7, s4, 14")
            A("s_lshl_b32 s8, s3, 12")
            A("s_add_u32 s7, s7, s8")
        if 'c' in self.dbg:
            A(f"v_lshrrev_b32 v{vB}, 3, v{vL}")
            A(f"v_mul_u32_u24 v{vB}, 3584, v{vB}")
            A(f"v_and_b32 v{vT0}, 7, v{vL}")
            A(f"v_lshl_add_u32 v{vB}, v{vT0}, 4, v{vB}")
            A("s_and_b32 s7, s4, 3")
            A("s_lshl_b32 s7, s7, 2")
            A("s_add_u32 s7, s7, s3")
            A(f"s_mul_i32 s7, s7, {32*3584}")
            A("s_lshr_b32 s8, s4, 2")
            A("s_lshl_b32 s8, s8, 7")
            A("s_add_u32 s7, s7, s8")
        A("s_lshl_b32 s8, s4, 14")
        A("s_lshl_b32 s9, s3, 8")
        A("s_add_u32 s8, s8, s9")

    def issue_weight(self, k):
        A = self.A
        grp, i = k >> 2, k & 3
        if grp == 0:
            A(f"s_add_u32 s{sT}, s6, {i*8192}")
            self.id_wo = self.load(f"buffer_load_dwordx4 {vr(vZ+8*i+4,4)}, v{vA}, {srd(sWO)}, s{sT} offen{'' if 'w' in self.dbg else ' nt'}")
        else:
            dst = vr(vRING+32+(k-4)*4,4,'v') if self.wl in (1, 3) else vr(128+(k-4)*4,4,'a')
            if grp in (1, 2):
                A(f"s_add_u32 s{sT}, s7, {i*(1024 if 'l' in self.dbg else 8*3584 if 'c' in self.dbg else 3584)}")
                self.id_w3[grp] = self.load(f"buffer_load_dwordx4 {dst}, v{vB}, {srd(sWG if grp == 1 else sWU)}, s{sT} offen{' nt' if 'n' in self.dbg else ''}")
            else:
                self.id_w3[grp] = self.load(f"buffer_load_dwordx4 {dst}, v{vC}, {srd(sWD)}, s8 offen offset:{i*1024} nt")

    def flags_issue(self):
        A = self.A
        A(f"s_mov_b32 s9, {WS_FL}")
        self.fl = [f"buffer_load_dwordx4 {vr(vE+4,4)}, v{vV}, {srd(sWS)}, s9 offen sc1"]
        self.id_fl = self.load(self.fl[0])
        if self.dyn == 2:
            A(f"v_lshlrev_b32 v{vD}, 3, v{vL}")
            self.fl.append(f"buffer_load_dwordx2 {vr(vE+2,2)}, v{vD}, {srd(sWS)}, s9 offen offset:{WS_KY-WS_FL} sc1")
            self.id_fl = self.load(self.fl[1])

    def flags_finish(self):
        A = self.A

        def chkf(k):
            if k == 1:
                A(f"v_cmp_ne_u32 s[{sMISS+2}:{sMISS+3}], s{sTAG}, v{vE+2}")
                return
            A(f"v_xor_b32 v{vE}, s{sTAG}, v{vE+4}")
            A(f"v_xor_b32 v{vE+1}, s{sTAG}, v{vE+5}")
            A(f"v_or_b32 v{vE}, v{vE}, v{vE+1}")
            A(f"v_xor_b32 v{vE+1}, s{sTAG}, v{vE+6}")
            A(f"v_or_b32 v{vE}, v{vE}, v{vE+1}")
            A(f"v_xor_b32 v{vE+1}, s{sTAG}, v{vE+7}")
            A(f"v_or_b32 v{vE}, v{vE}, v{vE+1}")
            A(f"v_cmp_ne_u32 s[{sMISS}:{sMISS+1}], 0, v{vE}")
        self.poll_finish(self.fl, chkf, self.id_fl)
        if self.dyn == 2:
            A(f"v_readfirstlane_b32 s{sU0}, v{vE+3}")
            A(f"s_sub_u32 s{sU0}, 0x2000000, s{sU0}")
            A(f"v_add_u32 v{vE+3}, s{sU0}, v{vE+3}")
            A(f"v_lshl_add_u32 v{vE+3}, v{vE+3}, 6, v{vL}")
            A(f"v_readlane_b32 s{sU0}, v{vE+3}, s{sRL}")
            A(f"v_cmp_gt_u32 vcc, s{sU0}, v{vE+3}")
            A("s_bcnt1_i32_b64 s5, vcc")
            A("s_lshl_b32 s5, s5, 2")
            A("s_add_u32 s4, s4, s5")
            self.role_set()
            self.role_addr()
            self.role_known = True

    def tail(self):
        A = self.A
        self.stamp("vdone")
        t = vAT
        ad = vE + 2
        A(f"v_and_b32 v{ad}, 3, v{vL}")
        A(f"v_lshrrev_b32 v{vT0}, 4, v{vL}")
        A(f"v_lshl_add_u32 v{ad}, v{ad}, 2, v{vT0}")
        A(f"v_mul_u32_u24 v{ad}, 144, v{ad}")
        A(f"s_mul_i32 s{sU0}, s3, 2304")
        A(f"v_add_u32 v{ad}, s{sU0}, v{ad}")
        rd = vE + 3
        A(f"s_and_b32 s{sU1}, s3, 1")
        A(f"s_mul_i32 s{sU0}, s{sU1}, {8*144}")
        A(f"v_lshrrev_b32 v{rd}, 3, v{vL}")
        A(f"v_mul_u32_u24 v{rd}, 144, v{rd}")
        A(f"v_and_b32 v{vT0}, 7, v{vL}")
        A(f"v_lshl_add_u32 v{rd}, v{vT0}, 4, v{rd}")
        A(f"v_add_u32 v{rd}, s{sU0}, v{rd}")
        A("s_mov_b32 exec_lo, 0x000f000f")
        A("s_mov_b32 exec_hi, 0x000f000f")
        for e in range(8):
            A(f"ds_write_b128 v{ad}, {vr(vACC+4*e,4)} offset:{L_OP+16*e}")
        A("s_mov_b64 exec, -1")
        A(f"s_lshl_b32 s{sU0}, s{sG}, 16")
        A(f"s_add_u32 s{sU2}, s{sU0}, {WS_O1}")
        A(f"s_lshl_b32 s{sU0}, s{sJ}, 11")
        A(f"s_add_u32 s{sU0}, s{sU0}, s{sU2}")
        A(f"s_lshl_b32 s{sU1}, s{sU1}, 10")
        A(f"s_add_u32 s{sU0}, s{sU0}, s{sU1}")
        A("s_waitcnt lgkmcnt(0)")
        A("s_barrier")
        skip = self.lab("Lo")
        A("s_cmp_gt_u32 s3, 1")
        A(f"s_cbranch_scc1 {skip}")
        for wv in range(4):
            A(f"ds_read_b128 {vr(t+4*wv,4)}, v{rd} offset:{L_OP+2304*wv}")
        A("s_waitcnt lgkmcnt(2)")
        A(f"v_pk_add_f32 {vr(t,2)}, {vr(t,2)}, {vr(t+4,2)}")
        A(f"v_pk_add_f32 {vr(t+2,2)}, {vr(t+2,2)}, {vr(t+6,2)}")
        A("s_waitcnt lgkmcnt(0)")
        A(f"v_pk_add_f32 {vr(t+8,2)}, {vr(t+8,2)}, {vr(t+12,2)}")
        A(f"v_pk_add_f32 {vr(t+10,2)}, {vr(t+10,2)}, {vr(t+14,2)}")
        A(f"v_pk_add_f32 {vr(t,2)}, {vr(t,2)}, {vr(t+8,2)}")
        A(f"v_pk_add_f32 {vr(t+2,2)}, {vr(t+2,2)}, {vr(t+10,2)}")
        if self.loc:
            glob = self.lab("Lg")
            A(f"s_cmp_eq_u32 s{sLOC}, 0")
            A(f"s_cbranch_scc1 {glob}")
            A(f"buffer_store_dwordx4 {vr(t,4)}, v{vV}, {srd(sWS)}, s{sU0} offen")
            A(f"s_branch {skip}")
            A(f"{glob}:")
        A(f"buffer_store_dwordx4 {vr(t,4)}, v{vV}, {srd(sWS)}, s{sU0} offen sc1")
        A(f"{skip}:")
        self.stamp("opub")
        pa = vE + 2
        A(f"v_lshrrev_b32 v{pa}, 4, v{vL}")
        A(f"v_lshlrev_b32 v{pa}, 11, v{pa}")
        A(f"v_and_b32 v{vT0}, 15, v{vL}")
        A(f"v_lshl_add_u32 v{pa}, v{vT0}, 4, v{pa}")
        A(f"s_lshr_b32 s{sU0}, s{sJ}, 4")
        A(f"s_lshl_b32 s{sU0}, s{sU0}, 10")
        A(f"s_add_u32 s{sU2}, s{sU2}, s{sU0}")
        A(f"s_lshl_b32 s{sU0}, s3, 8")
        A(f"s_add_u32 s{sU2}, s{sU2}, s{sU0}")
        for k in range(8):
            A(f"s_add_u32 s{10+k}, s{sU2}, {k*8192}")
        pb = vRING
        loads = [f"buffer_load_dwordx4 {vr(pb+4*k,4)}, v{pa}, {srd(sWS)}, s{10+k} offen sc1" for k in range(8)]
        pid = self.poll_issue(loads)[-1]
        if self.dyn == 1:
            self.role_poll_finish()
        if self.wl == 1:
            for k in range(4, 16):
                self.issue_weight(k)
        self.wait(self.id_wo)
        w2 = vACC
        self.perm_pairs(w2, vZ + 4, vZ + 12)
        self.perm_pairs(w2 + 8, vZ + 20, vZ + 28)
        self.poll_finish(loads, self.check_sentinel(pb), pid)
        self.stamp("hop1")
        for step in (4, 2, 1):
            for k in range(step):
                for h in (0, 2):
                    A(f"v_pk_add_f32 {vr(pb+4*k+h,2)}, {vr(pb+4*k+h,2)}, {vr(pb+4*(k+step)+h,2)}")
        self.tswap(32, [(pb, pb + 2), (pb + 1, pb + 3)])
        A(f"v_mov_b32 v{pb+2}, v{pb}")
        A(f"v_mov_b32 v{pb+3}, v{pb+1}")
        self.tswap(16, [(pb, pb + 2), (pb + 1, pb + 3)])
        A(f"v_cvt_pk_bf16_f32 v{pb}, v{pb}, v{pb+1}")
        A(f"v_mov_b32 v{pb+1}, v{pb}")
        A(f"v_permlane32_swap_b32 v{pb}, v{pb+1}")
        acc = pb + 4
        for c in range(8):
            A(f"v_dot2_f32_bf16 v{acc+c}, v{w2+c}, v{pb}, 0")
        for c in range(8):
            A(f"v_dot2_f32_bf16 v{acc+c}, v{w2+8+c}, v{pb+1}, v{acc+c}")
        r1 = acc + 8
        for c in range(4):
            self.dpp("v_add_f32", r1 + c, acc + c, acc + c, "row_ror:8", bank=0x3)
            self.dpp("v_add_f32", r1 + c, acc + c + 4, acc + c + 4, "row_ror:8", bank=0xc)
        r2 = r1 + 4
        for c in range(2):
            self.dpp("v_add_f32", r2 + c, r1 + c, r1 + c, "row_ror:12", bank=0x5)
            self.dpp("v_add_f32", r2 + c, r1 + c + 2, r1 + c + 2, "row_ror:4", bank=0xa)
        for q in ("quad_perm:[1,0,3,2]", "quad_perm:[2,3,0,1]"):
            for c in range(2):
                self.dpp("v_add_f32", r2 + c, r2 + c, r2 + c, q)
        A(f"v_lshlrev_b32 v{vT0}, 1, v{vL}")
        A(f"s_lshl_b32 s{sU0}, s3, 7")
        A(f"v_add_u32 v{vT0}, s{sU0}, v{vT0}")
        A("s_mov_b32 exec_lo, 0x11111111")
        A("s_mov_b32 exec_hi, 0x11111111")
        A(f"ds_write_b64 v{vT0}, {vr(r2,2)} offset:{L_S2}")
        A("s_mov_b64 exec, -1")
        A("s_waitcnt lgkmcnt(0)")
        A("s_barrier")
        skip = self.lab("La")
        A("s_cmp_lg_u32 s3, 0")
        A(f"s_cbranch_scc1 {skip}")
        A("s_mov_b64 exec, 0xff")
        for wv in range(4):
            A(f"ds_read_b128 {vr(t+4*wv,4)}, v{vV} offset:{L_S2+128*wv}")
        A("s_waitcnt lgkmcnt(2)")
        A(f"v_pk_add_f32 {vr(t,2)}, {vr(t,2)}, {vr(t+4,2)}")
        A(f"v_pk_add_f32 {vr(t+2,2)}, {vr(t+2,2)}, {vr(t+6,2)}")
        A("s_waitcnt lgkmcnt(0)")
        A(f"v_pk_add_f32 {vr(t+8,2)}, {vr(t+8,2)}, {vr(t+12,2)}")
        A(f"v_pk_add_f32 {vr(t+10,2)}, {vr(t+10,2)}, {vr(t+14,2)}")
        A(f"v_pk_add_f32 {vr(t,2)}, {vr(t,2)}, {vr(t+8,2)}")
        A(f"v_pk_add_f32 {vr(t+2,2)}, {vr(t+2,2)}, {vr(t+10,2)}")
        A(f"buffer_store_dwordx4 {vr(t,4)}, v{vV}, {srd(sWS)}, s{sP} offen sc1")
        A("s_mov_b64 exec, -1")
        A(f"{skip}:")
        self.stamp("apub")
        A("s_cmp_eq_u32 s5, 0")
        A("s_cbranch_scc1 L_fin")
        vW = vRING + 80
        if self.wl == 3:
            for k in range(4, 16):
                self.issue_weight(k)
        A(f"v_lshrrev_b32 v{pa}, 5, v{vL}")
        A(f"v_lshlrev_b32 v{pa}, 11, v{pa}")
        A(f"v_and_b32 v{vT0}, 31, v{vL}")
        A(f"v_lshl_add_u32 v{pa}, v{vT0}, 4, v{pa}")
        A(f"s_lshl_b32 s{sU0}, s3, 9")
        for k in range(8):
            A(f"s_add_u32 s{10+k}, s{sU0}, {WS_A2 + k*4096}")
        self.poll_issue(loads)
        for m in range(3):
            self.wait(self.id_w3[m + 1])
            if 'S' in self.dbg:
                self.stamp("w%d" % m)
            if self.wl in (1, 3):
                src = vRING + 32 + 16 * m
            else:
                src = vRD
                for i in range(16):
                    A(f"v_accvgpr_read_b32 v{vRD+i}, a{128+16*m+i}")
            self.perm_pairs(vW + 16 * m, src, src + 4)
            self.perm_pairs(vW + 16 * m + 8, src + 8, src + 12)
        x0, x1, hadr, radr, gadr = vE + 4, vE + 5, vE + 6, vE + 7, vE + 3
        A(f"v_lshlrev_b32 v{x0}, 16, v{vX3}")
        A(f"v_and_b32 v{x1}, 0xffff0000, v{vX3}")
        A(f"v_lshlrev_b32 v{hadr}, 3, v{vT0}")
        A(f"v_lshrrev_b32 v{vT0}, 5, v{vL}")
        A(f"v_lshl_add_u32 v{hadr}, v{vT0}, 2, v{hadr}")
        A(f"s_lshl_b32 s{sU0}, s3, 8")
        A(f"v_add_u32 v{hadr}, s{sU0}, v{hadr}")
        A(f"v_lshrrev_b32 v{radr}, 1, v{vL}")
        A(f"v_lshlrev_b32 v{radr}, 3, v{radr}")
        A(f"v_add_u32 v{radr}, s{sU0}, v{radr}")
        A(f"v_lshrrev_b32 v{gadr}, 5, v{vL}")
        A(f"v_lshlrev_b32 v{gadr}, 8, v{gadr}")
        A(f"v_and_b32 v{vT0}, 1, v{vL}")
        A(f"v_lshl_add_u32 v{gadr}, v{vT0}, 7, v{gadr}")
        A(f"v_bfe_u32 v{vT0}, v{vL}, 4, 1")
        A(f"v_lshl_add_u32 v{gadr}, v{vT0}, 6, v{gadr}")
        A(f"s_lshl_b32 s{sU0}, s3, 2")
        A(f"v_add_u32 v{gadr}, s{sU0}, v{gadr}")
        self.poll_finish(loads, self.check_sentinel(pb))
        self.stamp("hop2")
        for step in (4, 2, 1):
            for k in range(step):
                for h in (0, 2):
                    A(f"v_pk_add_f32 {vr(pb+4*k+h,2)}, {vr(pb+4*k+h,2)}, {vr(pb+4*(k+step)+h,2)}")
        self.tswap(32, [(pb, pb + 2), (pb + 1, pb + 3)])
        h0, h1, s1, s2, hp = pb, pb + 1, pb + 4, pb + 5, pb + 6
        self.rnd(h0, h0)
        self.rnd(h1, h1)
        A(f"v_add_f32 v{h0}, v{h0}, v{x0}")
        A(f"v_add_f32 v{h1}, v{h1}, v{x1}")
        A(f"v_cvt_pk_bf16_f32 v{hp}, v{h0}, v{h1}")
        A(f"v_lshlrev_b32 v{h0}, 16, v{hp}")
        A(f"v_and_b32 v{h1}, 0xffff0000, v{hp}")
        A(f"ds_write_b32 v{hadr}, v{hp} offset:{L_H}")
        A(f"v_add_f32 v{s1}, v{h0}, v{h1}")
        A(f"v_mul_f32 v{s2}, v{h0}, v{h0}")
        A(f"v_fmac_f32 v{s2}, v{h1}, v{h1}")
        for c in ("row_ror:8", "row_ror:4", "row_ror:2", "row_ror:1"):
            for r in (s1, s2):
                self.dpp("v_add_f32", r, r, r, c)
        for r in (s1, s2):
            self.dpp("v_add_f32", r, r, r, "row_bcast:15", row=0xa)
        for r in (s1, s2):
            self.dpp("v_add_f32", r, r, r, "row_bcast:31", row=0xc)
        A(f"s_lshl_b32 s{sU0}, s3, 3")
        A(f"v_mov_b32 v{vT0}, s{sU0}")
        A(f"v_mov_b32 v{pb+7}, 0")
        A("s_mov_b32 exec_lo, 0")
        A("s_mov_b32 exec_hi, 0x80000000")
        A(f"ds_write_b64 v{vT0}, {vr(s1,2)} offset:{L_LNS}")
        A("s_mov_b64 exec, -1")
        A("s_waitcnt lgkmcnt(0)")
        A("s_barrier")
        q = pb + 8
        A(f"ds_read_b128 {vr(q,4)}, v{pb+7} offset:{L_LNS}")
        A(f"ds_read_b128 {vr(q+4,4)}, v{pb+7} offset:{L_LNS+16}")
        A("s_waitcnt lgkmcnt(0)")
        A(f"v_pk_add_f32 {vr(q,2)}, {vr(q,2)}, {vr(q+2,2)}")
        A(f"v_pk_add_f32 {vr(q+4,2)}, {vr(q+4,2)}, {vr(q+6,2)}")
        A(f"v_pk_add_f32 {vr(q,2)}, {vr(q,2)}, {vr(q+4,2)}")
        mean, var, mb, rs = q, q + 1, q + 2, q + 3
        A(f"v_mul_f32 v{mean}, 0x3b000000, v{mean}")
        A(f"v_mul_f32 v{var}, 0x3b000000, v{var}")
        A(f"v_fma_f32 v{var}, -v{mean}, v{mean}, v{var}")
        self.ln_scalars(mean, var, mb, rs)
        self.norm_pair(hp, h0, h1, mb, rs)
        A(f"ds_write_b32 v{hadr}, v{hp} offset:{L_HN}")
        A(f"ds_read_b64 {vr(q+4,2)}, v{radr} offset:{L_HN}")
        A("s_waitcnt lgkmcnt(0)")
        hn = q + 4
        acc = pb + 16
        for m in range(2):
            for c in range(8):
                A(f"v_dot2_f32_bf16 v{acc+8*m+c}, v{vW+16*m+c}, v{hn}, 0")
        for m in range(2):
            for c in range(8):
                A(f"v_dot2_f32_bf16 v{acc+8*m+c}, v{vW+16*m+8+c}, v{hn+1}, v{acc+8*m+c}")
        self.tswap(32, [(acc + c, acc + 8 + c) for c in range(8)])
        self.tswap(16, [(acc + c, acc + 4 + c) for c in range(4)])
        for c in ("row_ror:4", "row_ror:8", "quad_perm:[2,3,0,1]"):
            for r in range(4):
                self.dpp("v_add_f32", acc + r, acc + r, acc + r, c)
        A("s_mov_b32 exec_lo, 0x00030003")
        A("s_mov_b32 exec_hi, 0x00030003")
        for r in range(4):
            A(f"ds_write_b32 v{gadr}, v{acc+r} offset:{L_GU+16*r}")
        A("s_mov_b64 exec, -1")
        A(f"v_and_b32 v{vT0}, 0xf0, v{vV}")
        A(f"v_lshrrev_b32 v{radr}, 4, v{vL}")
        A(f"v_lshlrev_b32 v{radr}, 3, v{radr}")
        A(f"s_lshl_b32 s{sU0}, s3, 5")
        A(f"v_add_u32 v{radr}, s{sU0}, v{radr}")
        A(f"v_lshlrev_b32 v{hadr}, 1, v{vL}")
        A(f"v_add_u32 v{hadr}, s{sU0}, v{hadr}")
        A(f"v_lshlrev_b32 v{gadr}, 1, v{vT0}")
        A(f"v_lshrrev_b32 v{x0}, 5, v{vL}")
        A(f"v_lshl_add_u32 v{gadr}, v{x0}, 4, v{gadr}")
        A(f"v_bfe_u32 v{x0}, v{vL}, 4, 1")
        A(f"v_lshl_add_u32 v{gadr}, v{x0}, 3, v{gadr}")
        A(f"s_lshl_b32 s{sU1}, s4, 11")
        A(f"s_lshl_b32 s{sU0}, s3, 9")
        A(f"s_add_u32 s{sU1}, s{sU1}, s{sU0}")
        A(f"s_add_u32 s{sU1}, s{sU1}, {WS_A3}")
        A("s_waitcnt lgkmcnt(0)")
        A("s_barrier")
        A(f"ds_read_b128 {vr(q,4)}, v{vT0} offset:{L_GU}")
        A(f"ds_read_b128 {vr(q+4,4)}, v{vT0} offset:{L_GU+256}")
        A("s_waitcnt lgkmcnt(0)")
        A(f"v_pk_add_f32 {vr(q,2)}, {vr(q,2)}, {vr(q+2,2)}")
        A(f"v_pk_add_f32 {vr(q+4,2)}, {vr(q+4,2)}, {vr(q+6,2)}")
        A(f"v_add_f32 v{q}, v{q}, v{q+1}")
        A(f"v_add_f32 v{q+4}, v{q+4}, v{q+5}")
        self.rnd(q, q)
        self.rnd(q + 4, q + 4)
        A(f"v_max_f32 v{q}, 0, v{q}")
        A(f"v_mul_f32 v{q}, v{q}, v{q+4}")
        A(f"v_cvt_pk_bf16_f32 v{q}, v{q}, v{q}")
        A("s_mov_b64 exec, 0xffff")
        A(f"ds_write_b16 v{hadr}, v{q} offset:{L_F}")
        A("s_mov_b64 exec, -1")
        A(f"ds_read_b64 {vr(q+4,2)}, v{radr} offset:{L_F}")
        A("s_waitcnt lgkmcnt(0)")
        for c in range(8):
            A(f"v_dot2_f32_bf16 v{acc+c}, v{vW+32+c}, v{q+4}, 0")
        for c in range(8):
            A(f"v_dot2_f32_bf16 v{acc+c}, v{vW+40+c}, v{q+5}, v{acc+c}")
        self.tswap(32, [(acc + c, acc + 4 + c) for c in range(4)])
        self.tswap(16, [(acc + c, acc + 2 + c) for c in range(2)])
        A(f"buffer_store_dwordx2 {vr(acc,2)}, v{gadr}, {srd(sWS)}, s{sU1} offen sc1")
        self.stamp("dpub")
        A("s_lshl_b32 s9, s3, 8")
        A("s_add_u32 s9, s9, s4")
        A("s_cmp_ge_u32 s9, 32")
        A("s_cbranch_scc1 L_fin")
        A(f"v_lshrrev_b32 v{pa}, 2, v{vL}")
        A(f"v_lshlrev_b32 v{pa}, 11, v{pa}")
        A(f"v_and_b32 v{vT0}, 3, v{vL}")
        A(f"v_lshl_add_u32 v{pa}, v{vT0}, 4, v{pa}")
        A(f"s_lshl_b32 s{sU0}, s4, 6")
        for k in range(7):
            A(f"s_add_u32 s{10+k}, s{sU0}, {WS_A3 + k*32768}")
        self.poll_issue(loads[:7])
        A(f"v_lshlrev_b32 v{x0}, 3, v{vT0}")
        A(f"v_lshrrev_b32 v{x1}, 5, v{vL}")
        A(f"v_lshl_add_u32 v{x0}, v{x1}, 2, v{x0}")
        A(f"v_bfe_u32 v{x1}, v{vL}, 4, 1")
        A(f"v_lshl_add_u32 v{x0}, v{x1}, 1, v{x0}")
        A(f"s_lshl_b32 s{sU0}, s4, 5")
        A(f"v_add_u32 v{x0}, s{sU0}, v{x0}")
        A(f"ds_read_u16 v{x1}, v{x0} offset:{L_H}")
        A(f"v_mov_b32 v{hadr}, s{sE}")
        A("s_waitcnt lgkmcnt(0)")
        A(f"v_lshlrev_b32 v{x1}, 16, v{x1}")
        self.poll_finish(loads[:7], self.check_sentinel(pb))
        self.stamp("hop3")
        for (a_, b_) in ((0, 4), (1, 5), (2, 6), (0, 2), (1, 3), (0, 1)):
            for h in (0, 2):
                A(f"v_pk_add_f32 {vr(pb+4*a_+h,2)}, {vr(pb+4*a_+h,2)}, {vr(pb+4*b_+h,2)}")
        self.tswap(32, [(pb, pb + 2), (pb + 1, pb + 3)])
        self.tswap(16, [(pb, pb + 1)])
        self.dpp("v_add_f32", pb, pb, pb, "row_ror:4")
        self.dpp("v_add_f32", pb, pb, pb, "row_ror:8")
        self.rnd(pb, pb)
        A(f"v_add_f32 v{pb}, v{pb}, v{x1}")
        A(f"v_cvt_pk_bf16_f32 v{pb}, v{pb}, v{pb}")
        A("s_mov_b32 exec_lo, 0x000f000f")
        A("s_mov_b32 exec_hi, 0x000f000f")
        A(f"buffer_store_short v{pb}, v{x0}, {srd(sOUT)}, 0 offen")
        A("s_cmp_lg_u32 s4, 0")
        A("s_cbranch_scc1 L_fin")
        A("s_mov_b64 exec, 1")
        A(f"buffer_store_dword v{hadr}, v{vV}, {srd(sWS)}, 0 offen sc1")
        if self.amp:
            self.stamp("fin")
            A(f"v_readlane_b32 s98, v{vST}, 0")
            A(f"v_readlane_b32 s99, v{vST}, 1")
            A("s_sub_u32 s98, s99, s98")
            A(f"s_sub_i32 s98, s98, {self.amp[1]}")
            A("s_max_i32 s98, s98, 0")
            A("s_min_i32 s98, s98, 3000")
            A("s_mul_i32 s98, s98, 10")
            self.delay("s98")
        A("L_fin:")
        A("s_mov_b64 exec, -1")
        if self.stamps:
            self.stamp("end")
            A(f"s_getreg_b32 s{sU0}, hwreg(HW_REG_XCC_ID)")
            A(f"v_writelane_b32 v{vST}, s{sU0}, 63")
            A(f"s_lshl_b32 s{sU0}, s2, 10")
            A(f"s_lshl_b32 s{sU1}, s3, 8")
            A(f"s_add_u32 s{sU0}, s{sU0}, s{sU1}")
            A(f"s_add_u32 s{sU0}, s{sU0}, {WS_STAMP}")
            A(f"v_lshlrev_b32 v{vT0}, 2, v{vL}")
            A(f"buffer_store_dword v{vST}, v{vT0}, {srd(sWS)}, s{sU0} offen")
        if 'E' in self.dbg:
            A("s_endpgm")
        A("L_end:")
        if 'E' in self.dbg:
            self.delay(10000)
        A("s_endpgm")

    def delay(self, ticks, skipreg=None):
        A = self.A
        lp, dn = self.lab("Ld"), self.lab("Le")
        if skipreg:
            A(f"s_cmp_lg_u32 {skipreg}, 0")
            A(f"s_cbranch_scc1 {dn}")
        A("s_memrealtime s[100:101]")
        A("s_waitcnt lgkmcnt(0)")
        A(f"{lp}:")
        A("s_memrealtime vcc")
        A("s_waitcnt lgkmcnt(0)")
        A("s_sub_u32 vcc_lo, vcc_lo, s100")
        A(f"s_cmp_lt_u32 vcc_lo, {ticks}")
        A(f"s_cbranch_scc1 {lp}")
        A(f"{dn}:")

    def pace_wait(self, n):
        if not self.pace or n < self.pace_from or n > self.pace_to:
            return
        A = self.A
        lim = int(round(self.pace0 + n * self.pace))
        lp = self.lab("Lw")
        A(f"{lp}:")
        A("s_memrealtime vcc")
        A("s_waitcnt lgkmcnt(0)")
        A(f"s_sub_u32 vcc_lo, vcc_lo, s{sT0}")
        A(f"s_cmp_lt_u32 vcc_lo, {lim}")
        A(f"s_cbranch_scc1 {lp}")

    def body(self):
        R, G = self.R, 8
        N = 256
        self.prologue()
        self.stamp("start")
        ids = {}
        st = dict(cons=0, q=False, s=False, w=False)
        hooks = {}
        for at, fn in ((self.W0, self.prologue2), (self.qat, self.qphase), (self.pq, self.qpoll_issue),
                       (128 + self.ps, self.spoll_issue), (128, self.weights_prep_addr), (self.fl_at, self.flags_issue)):
            hooks.setdefault(at, []).append(fn)
        if self.dyn == 1:
            hooks.setdefault(256, []).append(self.role_poll_issue)
        for i in range(4):
            if self.wqs[i]:
                hooks.setdefault(self.wqs[i], []).insert(0, (lambda i=i: self.issue_wq(i)))

        def consume_one():
            cons = st["cons"]
            if not st["q"]:
                self.qpoll_finish()
                st["q"] = True
            if cons >= 128 and not st["s"]:
                self.spoll_finish()
                st["s"] = True
            if cons == self.fl_chk:
                self.flags_finish()
                if self.dyn == 1:
                    self.role_ticket()
            if self.dyn == 1 and cons == self.rl_pub:
                self.role_publish()
            if self.wl and cons == self.wo_at:
                for k in range(4):
                    self.issue_weight(k)
            n = cons + G
            self.wait(ids[n - 1])
            if cons < 128:
                for i in range(cons, n):
                    self.consume_k(i)
            else:
                self.consume_v_group((cons - 128) // 8)
            st["cons"] = n
            if n == 128:
                self.stats_publish()

        def window(issued):
            if issued < self.W0:
                return 1 << 20
            return self.W if issued < self.Wat else self.W2

        issued = 0
        while issued < N:
            while issued + G - R > st["cons"]:
                consume_one()
            self.pace_wait(issued // G)
            for i0 in range(issued, issued + G, self.ig):
                w = window(i0)
                if i0 - (w - self.ig) > 0:
                    self.wait(ids[i0 - (w - self.ig) - 1])
                for i in range(i0, i0 + self.ig):
                    ids[i] = self.issue_stream(i)
            issued += G
            for h in hooks.get(issued, []):
                h()
            if not self.wl and not st["w"] and st["s"] and st["cons"] >= 176 and issued >= self.wat:
                for k in range(16):
                    self.issue_weight(k)
                st["w"] = True
            if self.wl == 2 and not st["w"] and self.role_known and st["cons"] >= 176 and issued >= self.wat:
                for k in range(4, 16):
                    self.issue_weight(k)
                st["w"] = True
            k = 0
            while k < self.slope and st["cons"] + G <= issued and ids[st["cons"] + G - 1] <= self.done:
                if not st["q"] and issued < self.holdq:
                    break
                if st["cons"] == 128 and not st["s"] and issued < min(128 + self.holds, N):
                    break
                consume_one()
                k += 1
        while st["cons"] < N:
            consume_one()
            if not self.wl and not st["w"] and st["cons"] >= 176:
                for k in range(16):
                    self.issue_weight(k)
                st["w"] = True
        assert self.wl != 2 or st["w"]
        if self.wl and self.wo_at >= 256:
            for k in range(4):
                self.issue_weight(k)
        self.tail()

    def text(self):
        self.body()
        lines, nn = asmlib.pad(self.L)
        hdr = [
            "; Fused pre-LN GQA decode block + ReGLU MLP, one persistent launch (generated by work/gen.py).",
            f"; @launch grid=(256,1,1) block=(256,1,1) lds={LDS_BYTES}",
            '.amdgcn_target "amdgcn-amd-amdhsa--gfx950"', ".text", f".globl {NAME}", ".p2align 8",
            f".type {NAME},@function", f"{NAME}:"]
        ftr = ['.section .rodata,"a"', ".p2align 6", f".amdhsa_kernel {NAME}",
               "  .amdhsa_next_free_vgpr 512", "  .amdhsa_next_free_sgpr 102", "  .amdhsa_accum_offset 256",
               "  .amdhsa_group_segment_fixed_size 0", "  .amdhsa_kernarg_size 96", "  .amdhsa_user_sgpr_count 2",
               "  .amdhsa_user_sgpr_kernarg_segment_ptr 1", "  .amdhsa_system_sgpr_workgroup_id_x 1", ".end_amdhsa_kernel"]
        if self.stamps:
            hdr.insert(1, "; stamps: " + " ".join(self.stamp_names))
        return "\n".join(hdr + lines + ftr) + "\n"


if __name__ == "__main__":
    out = sys.argv[1]
    kw = eval("dict(" + (sys.argv[2] if len(sys.argv) > 2 else "") + ")")
    open(out, "w").write(Gen(**kw).text())
```

```python
import sys, os
sys.path.insert(0, os.path.dirname(os.path.abspath(__file__)))
import asmlib

NAME = "sequential_preLN__gqa_block_cached__glu_gated_reglu__decode_kernel"

WS_RC = 0x800
WS_RL = 0x7000
WS_KY = 0x6800
WS_QB = 0x1000
WS_FL = 0x6000
WS_ST = 0x8000
WS_O1 = 0x10000
WS_A2 = 0x100000
WS_A3 = 0x110000
WS_STAMP = 0x200000
WS_SIZE = 0x300000
L_QP = 0
L_CNT = 256
L_STW = 512
L_OP = 1024
L_S2 = 10240
L_LNS = 13952
L_H = 11264
L_HN = 12288
L_GU = 13312
L_F = 13824
LDS_BYTES = 16384
sG, sJ, sE, sTAG = 28, 29, 30, 31
sK, sV, sWS, sX, sWQ, sWO, sWG, sWU, sWD, sOUT = 32, 36, 40, 44, 48, 52, 56, 60, 64, 68
sBASE, sT, sLO, sHI = 72, 73, 74, 75
sT16, sT2, sSPIN, sT1, sP = 76, 77, 78, 79, 80
sU0, sU1, sU2 = 81, 82, 83
sWQO, sRL = 24, 25
sXC, sLOC = 15, 27
sS2, sKL, sCB = 11, 12, 13
sT0 = 14
sM = 84
sMISS = 86
vL, vT0, vV, vK = 0, 1, 2, 3
vX3, vM, vLs, vST = 4, 5, 6, 7
vQ = 8
vA, vB, vC, vD = 12, 13, 14, 15
vZ = 16
vACC = 48
vAT = 80
vRD = 96
vBS = 112
vE = 120
vRING = 128
LOG2E = 0x3fb8aa3b
SPIN_LIMIT = 200000


def srd(i):
    return f"s[{i}:{i+3}]"


def vr(i, n=1, k="v"):
    return f"{k}{i}" if n == 1 else f"{k}[{i}:{i+n-1}]"


class Gen:
    def __init__(self, W=16, holdq=72, pq=56, holds=72, ps=56, slope=3, stamps=False, R=96, gmap=0, qat=24, W0=16, W2=None, Wat=256,
                 pace=0, pace0=0, pace_from=3, pace_to=31, wat=216, dbg='', wl=0, wo_at=256, loc=0, fl_at=200, fl_chk=240, wqs=(0,0,0,0), ig=8, dyn=0, rl_pub=232, nrole=28, amp=None, cln=0, osc='', cslp=0, ctl=None, wpos=None, rmap=0, prep_at=128, bars=(), dn2=0, hoist=0, split=0, wat2=0, sbar=0, dlate=0, clnp=0):
        self.sbar, self.dlate, self.clnp = sbar, dlate, clnp
        self.split, self.wat2 = split, wat2
        self.dn2, self.hoist = dn2, hoist
        self.bars = set(bars)
        self.wpos, self.rmap, self.prep_at = wpos, rmap, prep_at
        self.wa = 208 if wl == 4 else 128
        self.ctl = ctl
        self.cslp = cslp
        self.cln, self.osc = cln, osc
        self.amp = amp
        self.dyn, self.rl_pub, self.nrole = dyn, rl_pub, nrole
        self.ig = ig
        self.wqs = wqs
        self.wl, self.wo_at, self.loc, self.fl_at, self.fl_chk = wl, wo_at, loc, fl_at, fl_chk
        self.dbg = dbg
        self.W0, self.W2, self.Wat, self.wat = W0, (W2 or W), Wat, wat
        self.pace, self.pace0, self.pace_from, self.pace_to = pace, pace0, pace_from, pace_to
        self.gmap = gmap
        self.qat = qat
        self.W, self.holdq, self.pq, self.holds, self.ps, self.slope = W, holdq, pq, holds, ps, slope
        self.stamps = stamps
        self.R = R
        self.L = []
        self.id_w3 = {}
        self.role_known = not dyn
        self.nload = 0
        self.done = 0
        self.nlab = 0
        self.nstamp = 0
        self.stamp_names = []

    def A(self, s):
        self.L.append("  " + s if not s.endswith(":") else s)

    def lab(self, p="L"):
        self.nlab += 1
        return f"{p}_{self.nlab}"

    def load(self, text):
        self.A(text)
        self.nload += 1
        return self.nload

    def wait(self, lid):
        if lid <= self.done:
            return
        n = self.nload - lid
        self.A(f"s_waitcnt vmcnt({min(n, 63)})")
        self.done = lid if n <= 63 else self.nload - 63

    def waitall(self):
        self.A("s_waitcnt vmcnt(0)")
        self.done = self.nload

    def stamp(self, name):
        A = self.A
        if self.amp and name in ("start", self.amp[0]):
            A("s_memrealtime vcc")
            A("s_waitcnt lgkmcnt(0)")
            A(f"v_writelane_b32 v{vST}, vcc_lo, {0 if name == 'start' else 1}")
        if not self.stamps:
            return
        A("s_memrealtime vcc")
        A("s_waitcnt lgkmcnt(0)")
        A(f"v_writelane_b32 v{vST}, vcc_lo, {self.nstamp}")
        self.stamp_names.append(name)
        self.nstamp += 1

    def dpp(self, op, d, s0, s1, ctrl, bank=0xf, row=0xf):
        self.A(f"{op}_dpp v{d}, v{s0}, v{s1} {ctrl} row_mask:{row:#x} bank_mask:{bank:#x}")

    def wave_sum_to_sgpr(self, regs, sdst):
        for c in ("row_ror:8", "row_ror:4", "row_ror:2", "row_ror:1"):
            for r in regs:
                self.dpp("v_add_f32", r, r, r, c)
        for r in regs:
            self.dpp("v_add_f32", r, r, r, "row_bcast:15", row=0xa)
        for r in regs:
            self.dpp("v_add_f32", r, r, r, "row_bcast:31", row=0xc)
        for r, s in zip(regs, sdst):
            self.A(f"v_readlane_b32 s{s}, v{r}, 63")

    def allreduce_25(self, op, x, t):
        self.dpp(op, x, x, x, "row_ror:4")
        self.dpp(op, x, x, x, "row_ror:8")
        for sw in ("v_permlane16_swap_b32", "v_permlane32_swap_b32"):
            self.A(f"v_mov_b32 v{t}, v{x}")
            self.A(f"{sw} v{x}, v{t}")
            self.A(f"{op} v{x}, v{x}, v{t}")

    def tswap(self, which, pairs):
        sw = "v_permlane32_swap_b32" if which == 32 else "v_permlane16_swap_b32"
        for x, y in pairs:
            self.A(f"{sw} v{x}, v{y}")
        for x, y in pairs:
            self.A(f"v_add_f32 v{x}, v{x}, v{y}")

    def rnd(self, d, s):
        self.A(f"v_cvt_pk_bf16_f32 v{d}, 0, v{s}")

    def ln_scalars(self, vmean, vvar, vmb, vrs):
        A = self.A
        self.rnd(vmb, vmean)
        self.rnd(vrs, vvar)
        A(f"v_add_f32 v{vrs}, 0x3727c5ac, v{vrs}")
        self.rnd(vrs, vrs)
        A(f"v_sqrt_f32 v{vrs}, v{vrs}")
        self.rnd(vrs, vrs)
        A(f"v_rcp_f32 v{vrs}, v{vrs}")

    def norm_pair(self, d, lo, hi, vmb, vrs):
        A = self.A
        A(f"v_sub_f32 v{lo}, v{lo}, v{vmb}")
        A(f"v_sub_f32 v{hi}, v{hi}, v{vmb}")
        self.rnd(lo, lo)
        self.rnd(hi, hi)
        A(f"v_mul_f32 v{lo}, v{lo}, v{vrs}")
        A(f"v_mul_f32 v{hi}, v{hi}, v{vrs}")
        A(f"v_cvt_pk_bf16_f32 v{d}, v{lo}, v{hi}")

    def perm_pairs(self, dst, r0, r1):
        for u in range(4):
            self.A(f"v_perm_b32 v{dst+2*u}, v{r1+u}, v{r0+u}, s{sLO}")
            self.A(f"v_perm_b32 v{dst+2*u+1}, v{r1+u}, v{r0+u}, s{sHI}")

    def poll_issue(self, loads):
        ids = []
        for t in loads:
            ids.append(self.load(t))
        return ids

    def poll_finish(self, loads, check, counted_id=None):
        A = self.A
        n = len(loads)
        if counted_id is None:
            self.waitall()
        else:
            self.wait(counted_id)
        ldone, lretry = self.lab("Lpd"), self.lab("Lpr")

        def orall():
            if n == 1:
                A(f"s_mov_b64 s[{sM}:{sM+1}], s[{sMISS}:{sMISS+1}]")
            else:
                A(f"s_or_b64 s[{sM}:{sM+1}], s[{sMISS}:{sMISS+1}], s[{sMISS+2}:{sMISS+3}]")
                for k in range(2, n):
                    A(f"s_or_b64 s[{sM}:{sM+1}], s[{sM}:{sM+1}], s[{sMISS+2*k}:{sMISS+2*k+1}]")
            A(f"s_cmp_eq_u64 s[{sM}:{sM+1}], 0")
        for k in range(n):
            check(k)
        orall()
        A(f"s_cbranch_scc1 {ldone}")
        A(f"s_mov_b32 s{sSPIN}, {SPIN_LIMIT}")
        A(f"{lretry}:")
        for k in range(n):
            sk = self.lab("Lps")
            A(f"s_cmp_eq_u64 s[{sMISS+2*k}:{sMISS+2*k+1}], 0")
            A(f"s_cbranch_scc1 {sk}")
            A(f"s_mov_b64 exec, s[{sMISS+2*k}:{sMISS+2*k+1}]")
            for t in (loads[k] if isinstance(loads[k], (list, tuple)) else [loads[k]]):
                A(t)
            A(f"{sk}:")
        A("s_mov_b64 exec, -1")
        A("s_waitcnt vmcnt(0)")
        for k in range(n):
            sk = self.lab("Lpc")
            A(f"s_cmp_eq_u64 s[{sMISS+2*k}:{sMISS+2*k+1}], 0")
            A(f"s_cbranch_scc1 {sk}")
            check(k)
            A(f"{sk}:")
        orall()
        A(f"s_cbranch_scc1 {ldone}")
        A(f"s_sub_u32 s{sSPIN}, s{sSPIN}, 1")
        A(f"s_cmp_lg_u32 s{sSPIN}, 0")
        A(f"s_cbranch_scc1 {lretry}")
        A(f"{ldone}:")

    def check_sentinel(self, base):
        def chk(k):
            r = base + 4 * k
            t = vE + (k & 1)
            self.A(f"v_max3_u32 v{t}, v{r}, v{r+1}, v{r+2}")
            self.A(f"v_max_u32 v{t}, v{t}, v{r+3}")
            self.A(f"v_cmp_eq_u32 s[{sMISS+2*k}:{sMISS+2*k+1}], -1, v{t}")
        return chk

    def slot(self, i):
        s = i % self.R
        if s < 32:
            return ("a", s * 4)
        if s < 64:
            return ("v", vRING + (s - 32) * 4)
        return ("a", 128 + (s - 64) * 4)

    def issue_stream(self, i):
        t, r = self.slot(i)
        isK = i < 128
        a = i % 128
        off = (a >> 4) * (32 * 65536) + (a & 15) * 4096
        self.A(f"s_add_u32 s{sT}, s{sBASE}, {off}")
        return self.load(f"buffer_load_dwordx4 {vr(r,4,t)}, v{vK if isK else vV}, {srd(sK if isK else sV)}, s{sT} offen{'' if ('K' if isK else 'V') in self.dbg else ' nt'}")

    def k_dpp(self, a):
        d = vAT + (a & 3) * 4
        z = vZ + 8 * (a >> 5) + (a & 7)
        t = (a >> 3) & 3
        first = True
        for dp in (1, 2, 3):
            p = (t + dp) & 3
            ror = (4 * (t - p)) % 16
            self.dpp("v_add_f32", z, d + p, (d + t) if first else z, f"row_ror:{ror}", bank=1 << t)
            first = False
        if (a & 31) == 31:
            G = a >> 5
            zs = [vZ + 8 * G + i for i in range(8)]
            for z in zs:
                self.rnd(z, z)
            for z in zs:
                self.A(f"v_mul_f32 v{z}, 0x3db504f3, v{z}")
            for z in zs:
                self.rnd(z, z)
            if G == 0:
                self.A(f"v_max_f32 v{vM}, v{zs[0]}, v{zs[1]}")
                rest = zs[2:]
            else:
                rest = zs
            for i in range(0, len(rest), 2):
                self.A(f"v_max3_f32 v{vM}, v{vM}, v{rest[i]}, v{rest[i+1]}")

    def consume_k(self, a):
        t, r = self.slot(a)
        d = vAT + (a & 3) * 4
        self.A(f"v_mfma_f32_16x16x32_bf16 {vr(d,4)}, {vr(r,4,t)}, {vr(vQ,4)}, 0")
        if a >= 3:
            self.k_dpp(a - 3)
        if a == 127:
            for b in (125, 126, 127):
                self.k_dpp(b)

    def consume_v_group(self, gam):
        A = self.A
        G, t0 = gam >> 2, gam & 3
        pb = vZ + 8 * G
        if t0 == 0:
            B = pb
        else:
            B = vBS + (gam & 1) * 4
            for u in range(4):
                A(f"v_mov_b32_dpp v{B+u}, v{pb+u} row_ror:{16-4*t0} row_mask:0xf bank_mask:0xf")
        slots = [self.slot(128 + gam * 8 + tau) for tau in range(8)]
        for uu in range(4):
            src = []
            for tau in range(8):
                t, r = slots[tau]
                if t == "a":
                    tmp = vRD + (uu & 1) * 8 + tau
                    A(f"v_accvgpr_read_b32 v{tmp}, a{r+uu}")
                    src.append(tmp)
                else:
                    src.append(r + uu)
            alo = vAT + (uu & 1) * 8
            ahi = alo + 4
            for u in range(4):
                A(f"v_perm_b32 v{alo+u}, v{src[2*u+1]}, v{src[2*u]}, s{sLO}")
            for u in range(4):
                A(f"v_perm_b32 v{ahi+u}, v{src[2*u+1]}, v{src[2*u]}, s{sHI}")
            for e, a_ in ((2 * uu, alo), (2 * uu + 1, ahi)):
                acc = vr(vACC + 4 * e, 4)
                A(f"v_mfma_f32_16x16x32_bf16 {acc}, {vr(a_,4)}, {vr(B,4)}, {'0' if gam == 0 else acc}")

    def prologue(self):
        A = self.A
        A("s_cmp_ge_u32 s2, 256")
        A("s_cbranch_scc1 L_end")
        A("s_load_dwordx16 s[4:19], s[0:1], 0")
        A("s_load_dwordx8 s[20:27], s[0:1], 64")
        if self.pace or self.ctl:
            A("s_memrealtime vcc")
        A(f"v_lshrrev_b32 v{vT0}, 6, v0")
        A(f"v_and_b32 v{vL}, 63, v0")
        A(f"v_readfirstlane_b32 s3, v{vT0}")
        if self.gmap == 0:
            A(f"s_and_b32 s{sG}, s2, 7")
            A(f"s_lshr_b32 s{sJ}, s2, 3")
        elif self.gmap >= 2:
            A(f"s_add_u32 s{sG}, s2, {self.gmap - 1}")
            A(f"s_and_b32 s{sG}, s{sG}, 7")
            A(f"s_lshr_b32 s{sJ}, s2, 3")
        else:
            A(f"s_lshr_b32 s{sG}, s2, 5")
            A(f"s_and_b32 s{sJ}, s2, 31")
        A(f"v_lshlrev_b32 v{vV}, 4, v{vL}")
        A(f"v_bfe_u32 v{vK}, v{vL}, 2, 2")
        A(f"v_lshlrev_b32 v{vK}, 8, v{vK}")
        A(f"v_lshrrev_b32 v{vT0}, 4, v{vL}")
        A(f"v_lshl_add_u32 v{vK}, v{vT0}, 6, v{vK}")
        A(f"v_and_b32 v{vT0}, 3, v{vL}")
        A(f"v_lshl_add_u32 v{vK}, v{vT0}, 4, v{vK}")
        A(f"v_lshrrev_b32 v{vB}, 1, v{vL}")
        A(f"v_lshlrev_b32 v{vA}, {13 if 's' in self.dbg else 15 if 't' in self.dbg else 14}, v{vB}")
        A(f"v_and_b32 v{vT0}, 1, v{vL}")
        A(f"v_lshl_add_u32 v{vA}, v{vT0}, 4, v{vA}")
        A(f"v_lshlrev_b32 v{vB}, 2, v{vB}")
        A(f"v_and_b32 v{vC}, 31, v{vL}")
        A(f"v_lshlrev_b32 v{vC}, 3, v{vC}")
        A(f"v_lshrrev_b32 v{vT0}, 5, v{vL}")
        A(f"v_lshl_add_u32 v{vC}, v{vT0}, 2, v{vC}")
        for i in range(4):
            A(f"v_mov_b32 v{vQ+i}, -1")
        if self.stamps:
            A(f"v_mov_b32 v{vST}, 0")
        A(f"s_mov_b32 s{sLO}, 0x05040100")
        A(f"s_mov_b32 s{sHI}, 0x07060302")
        A(f"s_lshl_b32 s{sBASE}, s{sJ}, 16")
        A(f"s_lshl_b32 s{sT}, s3, 10")
        A(f"s_add_u32 s{sBASE}, s{sBASE}, s{sT}")
        A(f"s_lshl_b32 s{sT1}, s{sG}, 24")
        A(f"s_lshl_b32 s{sU0}, s{sG}, 10")
        A(f"s_lshl_b32 s{sU1}, s{sJ}, 5")
        A(f"s_add_u32 s{sU0}, s{sU0}, s{sU1}")
        A(f"s_lshl_b32 s{sU1}, s3, 20")
        A(f"s_add_u32 s{sU0}, s{sU0}, s{sU1}")
        A(f"s_lshl_b32 s{sU1}, s3, 8")
        A("s_waitcnt lgkmcnt(0)")
        A(f"s_load_dword s{sE}, s[26:27], 0")
        if self.pace or self.ctl:
            A(f"s_mov_b32 s{sT0}, vcc_lo")

        def mk(s, p, n):
            A(f"s_mov_b32 s{s}, s{p}")
            A(f"s_mov_b32 s{s+1}, s{p+1}")
            A(f"s_mov_b32 s{s+2}, {n}")
            A(f"s_mov_b32 s{s+3}, 0x20000")
        mk(sX, 4, 0 if 'x' in self.dbg else 1024)
        if 'r' in self.dbg:
            A(f"s_add_u32 s{sU0}, s{sU0}, 128")
        mk(sWQ, 10, 0 if 'q' in self.dbg else 512 * 8192)
        zx = vZ
        self.id_x = self.load(f"buffer_load_dwordx4 {vr(zx,4)}, v{vV}, {srd(sX)}, 0 offen")
        self.load(f"buffer_load_dword v{zx+4}, v{vB}, {srd(sX)}, s{sU1} offen")
        self.id_xp = self.load(f"buffer_load_dword v{zx+5}, v{vB}, {srd(sX)}, s{sU1} offen offset:128")
        A(f"s_mov_b32 s{sWQO}, s{sU0}")
        for i in range(4):
            if self.wqs[i] == 0:
                self.issue_wq(i)
        A(f"s_add_u32 s{sK}, s6, s{sT1}")
        A(f"s_addc_u32 s{sK+1}, s7, 0")
        A(f"s_mov_b32 s{sK+2}, {16<<20}")
        A(f"s_mov_b32 s{sK+3}, 0x20000")
        A(f"s_add_u32 s{sV}, s8, s{sT1}")
        A(f"s_addc_u32 s{sV+1}, s9, 0")
        A(f"s_mov_b32 s{sV+2}, {16<<20}")
        A(f"s_mov_b32 s{sV+3}, 0x20000")
        mk(sWS, 26, WS_SIZE)
        self.mk = mk

    def issue_wq(self, i):
        off = (i & 1) * 8192 + (i >> 1) * 64 * 8192
        if 's' in self.dbg:
            off = i * 32 * 8192
        if 't' in self.dbg:
            off = i * 8192
        self.A(f"s_add_u32 s{sT}, s{sWQO}, {off}")
        self.id_wq = self.load(f"buffer_load_dwordx4 {vr(vZ+8+4*i,4)}, v{vA}, {srd(sWQ)}, s{sT} offen{' nt' if 'N' in self.dbg else ''}")

    def prologue2(self):
        A = self.A
        mk = self.mk
        self.load(f"buffer_load_dword v{vX3}, v{vC}, {srd(sX)}, s{sU1} offen")
        A(f"s_lshl_b32 s{sU0}, s{sG}, 16")
        A(f"s_lshl_b32 s{sU1}, s{sJ}, 11")
        A(f"s_add_u32 s{sU0}, s{sU0}, s{sU1}")
        A(f"s_add_u32 s{sU0}, s{sU0}, {WS_O1}")
        A(f"s_lshl_b32 s{sU1}, s2, 11")
        A(f"s_add_u32 s{sU1}, s{sU1}, {WS_A3 - 2048}")
        A("s_cmp_lt_u32 s3, 2")
        A(f"s_cselect_b32 s{sU0}, s{sU0}, s{sU1}")
        A(f"s_lshl_b32 s{sU1}, s3, 10")
        A(f"s_add_u32 s{sU0}, s{sU0}, s{sU1}")
        if 'z' not in self.dbg:
            A(f"buffer_store_dwordx4 {vr(vQ,4)}, v{vV}, {srd(sWS)}, s{sU0} offen sc1")
        A(f"s_lshl_b32 s{sP}, s{sG}, 12")
        A(f"s_lshr_b32 s{sU1}, s{sJ}, 4")
        A(f"s_lshl_b32 s{sU1}, s{sU1}, 11")
        A(f"s_add_u32 s{sP}, s{sP}, s{sU1}")
        A(f"s_and_b32 s{sU1}, s{sJ}, 15")
        A(f"s_lshl_b32 s{sU1}, s{sU1}, 7")
        A(f"s_add_u32 s{sP}, s{sP}, s{sU1}")
        A(f"s_add_u32 s{sP}, s{sP}, {WS_A2}")
        A("s_mov_b64 exec, 0xff")
        if 'z' not in self.dbg:
            A(f"buffer_store_dwordx4 {vr(vQ,4)}, v{vV}, {srd(sWS)}, s{sP} offen sc1")
        A("s_mov_b64 exec, -1")
        mk(sWO, 12, 0 if 'o' in self.dbg else 4096 * 1024)
        mk(sWG, 16, 0)
        mk(sWU, 18, 0)
        mk(sWD, 20, 0)
        if self.split:
            A(f"s_bfe_u32 s{sS2}, s{sJ}, 0x10002")
            A(f"s_cmp_lg_u32 s{sS2}, 0")
            A(f"s_cselect_b32 s{sWO+2}, s{sWO+2}, 0")
            A(f"s_and_b32 s4, s{sJ}, 3")
            A(f"s_or_b32 s{sKL}, s4, s{sS2}")
            A(f"s_lshl_b32 s{sRL}, s{sG}, 2")
            A(f"s_lshr_b32 s{sU1}, s{sJ}, 3")
            A(f"s_add_u32 s{sRL}, s{sRL}, s{sU1}")
            A(f"s_bfe_u32 s{sU0}, s{sJ}, 0x10003")
            A(f"s_lshl_b32 s{sU0}, s{sU0}, 2")
            A(f"s_add_u32 s{sCB}, s{sU0}, s4")
            A(f"s_lshl_b32 s{sP}, s{sG}, 12")
            A(f"s_lshr_b32 s{sU1}, s{sJ}, 4")
            A(f"s_lshl_b32 s{sU1}, s{sU1}, 11")
            A(f"s_add_u32 s{sP}, s{sP}, s{sU1}")
            A(f"s_lshl_b32 s{sU1}, s{sCB}, 8")
            A(f"s_add_u32 s{sP}, s{sP}, s{sU1}")
            A(f"s_add_u32 s{sP}, s{sP}, {WS_A2}")
        elif self.dyn == 2:
            A("s_bfe_u32 s4, s2, 0x20003")
            A(f"s_and_b32 s{sRL}, s2, 7")
            A(f"s_lshl_b32 s{sRL}, s{sRL}, 3")
            A(f"s_lshr_b32 s{sU1}, s2, 5")
            A(f"s_add_u32 s{sRL}, s{sRL}, s{sU1}")
        elif self.dyn:
            A("s_bfe_u32 s4, s2, 0x20003")
            A("s_or_b32 s5, s4, s3")
            A(f"s_and_b32 s{sRL}, s2, 7")
            A(f"s_lshl_b32 s{sRL}, s{sRL}, 7")
            A(f"s_lshr_b32 s{sU1}, s2, 5")
            A(f"s_lshl_b32 s{sU1}, s{sU1}, 2")
            A(f"s_add_u32 s{sRL}, s{sRL}, s{sU1}")
            A(f"s_add_u32 s{sRL}, s{sRL}, {WS_RL}")
            skip = self.lab("Lz")
            A(f"s_or_b32 s{sU1}, s2, s3")
            A(f"s_cmp_lg_u32 s{sU1}, 0")
            A(f"s_cbranch_scc1 {skip}")
            A("s_mov_b64 exec, 1")
            A(f"buffer_store_dword v{vV}, v{vV}, {srd(sWS)}, 0 offen offset:{WS_RC} sc1")
            A("s_mov_b64 exec, -1")
            A(f"{skip}:")
        else:
            A("s_lshr_b32 s5, s2, 5")
            if self.rmap == 1:
                A("s_sub_u32 s4, 7, s5")
                A("s_sub_u32 s9, s5, 3")
                A("s_cmp_lt_u32 s9, 2")
                A("s_cselect_b32 s5, s4, s5")
            A("s_lshl_b32 s5, s5, 3")
            A("s_and_b32 s4, s2, 7")
            A("s_add_u32 s4, s4, s5")
            A("s_lshl_b32 s4, s4, 2")
            A("s_bfe_u32 s5, s2, 0x20003")
            A("s_add_u32 s4, s4, s5")
            self.role_set()
        mk(sOUT, 22, 1024)

    def role_set(self):
        A = self.A
        A("s_cmp_lt_u32 s4, 112")
        A("s_cselect_b32 s5, 1, 0")
        if 'g' not in self.dbg:
            A(f"s_cselect_b32 s{sWG+2}, {512*3584}, 0")
            A(f"s_cselect_b32 s{sWU+2}, {512*3584}, 0")
        if 'd' not in self.dbg:
            A(f"s_cselect_b32 s{sWD+2}, {1792*1024}, 0")

    def role_ticket(self):
        A = self.A
        skip = self.lab("Lt")
        A("s_cmp_lg_u32 s5, 0")
        A(f"s_cbranch_scc1 {skip}")
        A(f"v_mov_b32 v{vE+4}, 1")
        A("s_mov_b64 exec, 1")
        A(f"buffer_atomic_add v{vE+4}, v{vV}, {srd(sWS)}, 0 offen offset:{WS_RC} sc0")
        A("s_mov_b64 exec, -1")
        A(f"{skip}:")
        self.id_tk = self.nload + 1

    def role_publish(self):
        A = self.A
        assert self.id_tk <= self.nload
        self.wait(self.id_tk)
        skip = self.lab("Lt")
        A("s_cmp_lg_u32 s5, 0")
        A(f"s_cbranch_scc1 {skip}")
        A(f"v_min_u32 v{vE+4}, 255, v{vE+4}")
        A(f"v_lshlrev_b32 v{vE+4}, 16, v{vE+4}")
        A(f"v_or_b32 v{vE+4}, s{sT16}, v{vE+4}")
        A("s_mov_b64 exec, 1")
        A(f"buffer_store_dword v{vE+4}, v{vV}, {srd(sWS)}, s{sRL} offen sc1")
        A("s_mov_b64 exec, -1")
        A(f"{skip}:")

    def role_poll_issue(self):
        self.rl = [f"buffer_load_dword v{vE+5}, off, {srd(sWS)}, s{sRL} sc1"]
        self.id_rl = self.load(self.rl[0])

    def role_poll_finish(self):
        A = self.A

        def chk(k):
            A(f"v_and_b32 v{vE+6}, 0xffff, v{vE+5}")
            A(f"v_cmp_ne_u32 s[{sMISS}:{sMISS+1}], s{sT16}, v{vE+6}")
        self.poll_finish(self.rl, chk, self.id_rl)
        A(f"v_readfirstlane_b32 s5, v{vE+5}")
        A("s_lshr_b32 s5, s5, 16")
        A("s_lshl_b32 s5, s5, 2")
        A("s_add_u32 s4, s4, s5")
        self.role_set()
        self.role_addr()

    def qphase(self):
        A = self.A
        zx = vZ
        t = vACC
        self.wait(self.id_xp)
        for u in range(4):
            A(f"v_lshlrev_b32 v{t+2*u}, 16, v{zx+u}")
            A(f"v_and_b32 v{t+2*u+1}, 0xffff0000, v{zx+u}")
        s = t + 8
        A(f"v_add_f32 v{s}, v{t}, v{t+1}")
        for i in range(2, 8):
            A(f"v_add_f32 v{s}, v{s}, v{t+i}")
        self.wave_sum_to_sgpr([s], [sU0])
        mean, var, mb, rs = t + 9, t + 10, t + 11, t + 12
        A(f"v_mov_b32 v{mean}, 0x3b000000")
        A(f"v_mul_f32 v{mean}, s{sU0}, v{mean}")
        for i in range(8):
            A(f"v_sub_f32 v{t+i}, v{t+i}, v{mean}")
        A(f"v_mul_f32 v{s}, v{t}, v{t}")
        for i in range(1, 8):
            A(f"v_fmac_f32 v{s}, v{t+i}, v{t+i}")
        self.wave_sum_to_sgpr([s], [sU0])
        A(f"v_mov_b32 v{var}, 0x3b000000")
        A(f"v_mul_f32 v{var}, s{sU0}, v{var}")
        self.ln_scalars(mean, var, mb, rs)
        xn = t + 14
        for i in range(2):
            A(f"v_lshlrev_b32 v{t+2*i}, 16, v{zx+4+i}")
            A(f"v_and_b32 v{t+2*i+1}, 0xffff0000, v{zx+4+i}")
            self.norm_pair(xn + i, t + 2 * i, t + 2 * i + 1, mb, rs)
        self.wait(self.id_wq)
        w = zx + 8
        p0, p1 = vAT, vAT + 8
        self.perm_pairs(p0, w, w + 4)
        self.perm_pairs(p1, w + 8, w + 12)
        acc = t + 16
        for c in range(8):
            A(f"v_dot2_f32_bf16 v{acc+c}, v{p0+c}, v{xn}, 0")
        for c in range(8):
            A(f"v_dot2_f32_bf16 v{acc+c}, v{p1+c}, v{xn+1}, v{acc+c}")
        self.tswap(32, [(acc + c, acc + c + 4) for c in range(4)])
        self.tswap(16, [(acc + c, acc + c + 2) for c in range(2)])
        for c in ("row_ror:4", "row_ror:8", "quad_perm:[2,3,0,1]"):
            for r in (acc, acc + 1):
                self.dpp("v_add_f32", r, r, r, c)
        ad = t
        A(f"v_and_b32 v{ad}, 1, v{vL}")
        A(f"v_lshlrev_b32 v{ad}, 5, v{ad}")
        A(f"v_lshrrev_b32 v{t+1}, 4, v{vL}")
        A(f"v_lshl_add_u32 v{ad}, v{t+1}, 3, v{ad}")
        A(f"s_lshl_b32 s{sU0}, s3, 6")
        A(f"v_add_u32 v{ad}, s{sU0}, v{ad}")
        A(f"v_mov_b32 v{t+2}, 0")
        A(f"s_mov_b32 exec_lo, 0x00030003")
        A(f"s_mov_b32 exec_hi, 0x00030003")
        A(f"ds_write_b64 v{ad}, {vr(acc,2)} offset:{L_QP}")
        A(f"ds_write_b32 v{t+2}, v{t+2} offset:{L_CNT}")
        A("s_mov_b64 exec, -1")
        A("s_waitcnt lgkmcnt(0)")
        A(f"s_add_u32 s{sE}, s{sE}, 1")
        A(f"s_and_b32 s{sTAG}, s{sE}, 0xff")
        A(f"s_mul_i32 s{sTAG}, s{sTAG}, 0x01010101")
        A(f"s_xor_b32 s{sTAG}, s{sTAG}, 0x33aa5500")
        A(f"s_and_b32 s{sT16}, s{sTAG}, 0xffff")
        A(f"s_mul_i32 s{sT2}, s{sT16}, 0x10001")
        A(f"s_getreg_b32 s{sXC}, hwreg(HW_REG_XCC_ID)")
        A(f"s_lshl_b32 s{sXC}, s{sXC}, 16")
        A(f"s_or_b32 s{sXC}, s{sXC}, s{sT16}")
        A("s_barrier")
        skip = self.lab("Lq")
        A("s_cmp_lg_u32 s3, 0")
        A(f"s_cbranch_scc1 {skip}")
        A("s_mov_b64 exec, 0xf")
        for wv in range(4):
            A(f"ds_read_b128 {vr(t+4*wv,4)}, v{vV} offset:{L_QP+64*wv}")
        A(f"s_lshl_b32 s{sU0}, s{sG}, 11")
        A(f"s_lshl_b32 s{sU1}, s{sJ}, 6")
        A(f"s_add_u32 s{sU0}, s{sU0}, s{sU1}")
        A(f"s_add_u32 s{sU0}, s{sU0}, {WS_QB}")
        A("s_waitcnt lgkmcnt(0)")
        for i in range(4):
            A(f"v_add_f32 v{t+i}, v{t+i}, v{t+4+i}")
            A(f"v_add_f32 v{t+8+i}, v{t+8+i}, v{t+12+i}")
        for i in range(4):
            A(f"v_add_f32 v{t+i}, v{t+i}, v{t+8+i}")
        for i in range(4):
            self.rnd(t + i, t + i)
        for i in range(4):
            A(f"v_or_b32 v{t+i}, s{sT16}, v{t+i}")
        A(f"buffer_store_dwordx4 {vr(t,4)}, v{vV}, {srd(sWS)}, s{sU0} offen sc1")
        A("s_mov_b64 exec, -1")
        A(f"{skip}:")
        self.stamp("qpub")

    def qpoll_issue(self):
        A = self.A
        ad = vE + 2
        A(f"v_and_b32 v{ad}, 3, v{vL}")
        A(f"v_lshlrev_b32 v{ad}, 9, v{ad}")
        A(f"v_lshrrev_b32 v{vT0}, 2, v{vL}")
        A(f"v_lshl_add_u32 v{ad}, v{vT0}, 5, v{ad}")
        A(f"s_lshl_b32 s{sU2}, s{sG}, 11")
        A(f"s_add_u32 s{sU2}, s{sU2}, {WS_QB}")
        b = vACC
        self.q_loads = [[f"buffer_load_dwordx4 {vr(b,4)}, v{ad}, {srd(sWS)}, s{sU2} offen sc1",
                         f"buffer_load_dwordx4 {vr(b+4,4)}, v{ad}, {srd(sWS)}, s{sU2} offen offset:16 sc1"]]
        self.load(self.q_loads[0][0])
        self.id_q = self.load(self.q_loads[0][1])

    def qpoll_finish(self):
        A = self.A
        b = vACC
        t = vACC + 8

        def chk(k):
            for u in range(4):
                A(f"v_perm_b32 v{t+u}, v{b+2*u+1}, v{b+2*u}, s{sLO}")
            for u in range(4):
                A(f"v_xor_b32 v{t+u}, s{sT2}, v{t+u}")
            A(f"v_or3_b32 v{t}, v{t}, v{t+1}, v{t+2}")
            A(f"v_or_b32 v{t}, v{t}, v{t+3}")
            A(f"v_cmp_ne_u32 s[{sMISS}:{sMISS+1}], 0, v{t}")
        self.stamp("qchk")
        self.poll_finish(self.q_loads, chk, self.id_q)
        for u in range(4):
            A(f"v_perm_b32 v{vQ+u}, v{b+2*u+1}, v{b+2*u}, s{sHI}")
        self.stamp("qok")

    def expd(self, d, a, b):
        self.A(f"v_sub_f32 v{d}, v{a}, v{b}")
        self.A(f"v_mul_f32 v{d}, {LOG2E:#x}, v{d}")
        self.A(f"v_exp_f32 v{d}, v{d}")

    def stats_publish(self):
        A = self.A
        self.stamp("kdone")
        for z in range(32):
            A(f"v_sub_f32 v{vZ+z}, v{vZ+z}, v{vM}")
        for z in range(32):
            A(f"v_mul_f32 v{vZ+z}, {LOG2E:#x}, v{vZ+z}")
        for z in range(32):
            A(f"v_exp_f32 v{vZ+z}, v{vZ+z}")
        t = vAT
        for i in range(4):
            A(f"v_add_f32 v{t+i}, v{vZ+i}, v{vZ+4+i}")
        for z in range(8, 32):
            A(f"v_add_f32 v{t+(z&3)}, v{t+(z&3)}, v{vZ+z}")
        A(f"v_add_f32 v{t}, v{t}, v{t+1}")
        A(f"v_add_f32 v{t+2}, v{t+2}, v{t+3}")
        A(f"v_add_f32 v{vLs}, v{t}, v{t+2}")
        mw, lw, tt = t + 4, t + 5, t + 6
        A(f"v_mov_b32 v{mw}, v{vM}")
        self.allreduce_25("v_max_f32", mw, tt)
        self.expd(lw, vM, mw)
        A(f"v_mul_f32 v{lw}, v{lw}, v{vLs}")
        self.allreduce_25("v_add_f32", lw, tt)
        ad = t + 7
        A(f"v_lshlrev_b32 v{ad}, 3, v{vL}")
        A(f"s_lshl_b32 s{sU0}, s3, 5")
        A(f"v_add_u32 v{tt}, s{sU0}, v{ad}")
        A(f"v_mov_b32 v{t+8}, 0")
        A(f"v_mov_b32 v{t+9}, 1")
        A("s_mov_b64 exec, 0xf")
        A(f"ds_write_b64 v{tt}, {vr(mw,2)} offset:{L_STW}")
        A("s_mov_b64 exec, 1")
        A(f"ds_add_rtn_u32 v{t+10}, v{t+8}, v{t+9} offset:{L_CNT}")
        A("s_mov_b64 exec, -1")
        A(f"v_and_b32 v{ad}, 0x78, v{ad}")
        A("s_waitcnt lgkmcnt(0)")
        A(f"v_readfirstlane_b32 s{sU0}, v{t+10}")
        skip = self.lab("Ls")
        A(f"s_cmp_lg_u32 s{sU0}, 3")
        A(f"s_cbranch_scc1 {skip}")
        m, l = t + 8, t + 9
        A(f"ds_read_b64 {vr(m,2)}, v{ad} offset:{L_STW}")
        if self.dyn == 2:
            A("s_memrealtime vcc")
        A(f"s_lshl_b32 s{sU0}, s{sG}, 11")
        A(f"s_lshl_b32 s{sU1}, s{sJ}, 6")
        A(f"s_add_u32 s{sU0}, s{sU0}, s{sU1}")
        A(f"s_add_u32 s{sU0}, s{sU0}, {WS_ST}")
        A(f"s_lshl_b32 s{sU1}, s2, 2")
        A(f"s_add_u32 s{sU1}, s{sU1}, {WS_FL}")
        A("s_waitcnt lgkmcnt(0)")
        o = t + 12
        A(f"v_mov_b32 v{o}, v{m}")
        self.dpp("v_max_f32", o, o, o, "row_ror:4")
        self.dpp("v_max_f32", o, o, o, "row_ror:8")
        self.expd(tt, m, o)
        A(f"v_mul_f32 v{l}, v{l}, v{tt}")
        self.dpp("v_add_f32", l, l, l, "row_ror:4")
        self.dpp("v_add_f32", l, l, l, "row_ror:8")
        A(f"v_or_b32 v{o}, s{sT16}, v{o}")
        A(f"v_and_b32 v{o+1}, 0xffff0000, v{l}")
        A(f"v_or_b32 v{o+1}, s{sT16}, v{o+1}")
        A(f"v_lshlrev_b32 v{o+2}, 16, v{l}")
        A(f"v_or_b32 v{o+2}, s{sT16}, v{o+2}")
        A(f"v_mov_b32 v{o+3}, s{sXC}")
        A(f"v_mov_b32 v{tt}, s{sTAG}")
        A("s_mov_b64 exec, 0xf")
        A(f"buffer_store_dwordx4 {vr(o,4)}, v{vV}, {srd(sWS)}, s{sU0} offen sc1")
        A("s_mov_b64 exec, 1")
        A(f"buffer_store_dword v{tt}, v{vV}, {srd(sWS)}, s{sU1} offen sc1")
        if self.dyn == 2:
            assert tt % 2 == 0
            A(f"v_mov_b32 v{tt+1}, vcc_lo")
            A(f"s_lshl_b32 s{sU1}, s{sRL}, 3")
            A(f"s_add_u32 s{sU1}, s{sU1}, {WS_KY}")
            A(f"s_cmp_lg_u32 s{sKL if self.split else 4}, 0")
            A(f"s_cbranch_scc1 {skip}x")
            A(f"buffer_store_dwordx2 {vr(tt,2)}, v{vV}, {srd(sWS)}, s{sU1} offen sc1")
            A(f"{skip}x:")
        A("s_mov_b64 exec, -1")
        A(f"{skip}:")
        self.stamp("spub")

    def spoll_issue(self):
        A = self.A
        A(f"s_lshl_b32 s{sU2}, s{sG}, 11")
        A(f"s_add_u32 s{sU2}, s{sU2}, {WS_ST}")
        b = vACC
        self.s_loads = [[f"buffer_load_dwordx4 {vr(b,4)}, v{vV}, {srd(sWS)}, s{sU2} offen sc1",
                         f"buffer_load_dwordx4 {vr(b+4,4)}, v{vV}, {srd(sWS)}, s{sU2} offen offset:1024 sc1"]]
        self.load(self.s_loads[0][0])
        self.id_s = self.load(self.s_loads[0][1])

    def spoll_finish(self):
        A = self.A
        b = vACC
        t = vACC + 8

        def chk(k):
            A(f"v_perm_b32 v{t}, v{b+1}, v{b}, s{sLO}")
            A(f"v_perm_b32 v{t+1}, v{b+5}, v{b+4}, s{sLO}")
            A(f"v_perm_b32 v{t+2}, v{b+6}, v{b+2}, s{sLO}")
            A(f"v_perm_b32 v{t+3}, v{b+7}, v{b+3}, s{sLO}")
            for u in range(4):
                A(f"v_xor_b32 v{t+u}, s{sT2}, v{t+u}")
            A(f"v_or3_b32 v{t}, v{t}, v{t+1}, v{t+2}")
            A(f"v_or_b32 v{t}, v{t}, v{t+3}")
            A(f"v_cmp_ne_u32 s[{sMISS}:{sMISS+1}], 0, v{t}")
        self.stamp("schk")
        self.poll_finish(self.s_loads, chk, self.id_s)
        A(f"v_xor_b32 v{t}, s{sXC}, v{b+3}")
        A(f"v_xor_b32 v{t+1}, s{sXC}, v{b+7}")
        A(f"v_or_b32 v{t}, v{t}, v{t+1}")
        A(f"v_cmp_ne_u32 vcc, 0, v{t}")
        A("s_cmp_eq_u64 vcc, 0")
        A(f"s_cselect_b32 s{sLOC}, 1, 0")
        if 'P' in self.dbg:
            self.delay(3000, f"s{sLOC}")
        ma, mb, la, lb, M, tt, f = t, t + 1, t + 2, t + 3, t + 4, t + 5, t + 6
        A(f"v_and_b32 v{ma}, 0xffff0000, v{b}")
        A(f"v_and_b32 v{mb}, 0xffff0000, v{b+4}")
        A(f"v_perm_b32 v{la}, v{b+1}, v{b+2}, s{sHI}")
        A(f"v_perm_b32 v{lb}, v{b+5}, v{b+6}, s{sHI}")
        A(f"v_max_f32 v{M}, v{ma}, v{mb}")
        self.allreduce_25("v_max_f32", M, tt)
        self.expd(ma, ma, M)
        self.expd(mb, mb, M)
        A(f"v_mul_f32 v{la}, v{la}, v{ma}")
        A(f"v_fmac_f32 v{la}, v{lb}, v{mb}")
        self.allreduce_25("v_add_f32", la, tt)
        A(f"v_rcp_f32 v{lb}, v{la}")
        self.expd(f, vM, M)
        A(f"v_fma_f32 v{tt}, -v{la}, v{lb}, 1.0")
        A(f"v_fmac_f32 v{lb}, v{tt}, v{lb}")
        A(f"v_mul_f32 v{f}, v{f}, v{lb}")
        for z in range(32):
            A(f"v_mul_f32 v{vZ+z}, v{vZ+z}, v{f}")
        for G in range(4):
            for u in range(4):
                A(f"v_cvt_pk_bf16_f32 v{vZ+8*G+u}, v{vZ+8*G+2*u}, v{vZ+8*G+2*u+1}")
        self.stamp("sok")

    def weights_prep_addr(self):
        A = self.A
        A(f"v_bfe_u32 v{vA}, v{vL}, 3, 1")
        A(f"v_lshlrev_b32 v{vA}, 15, v{vA}")
        A(f"v_and_b32 v{vT0}, 7, v{vL}")
        A(f"v_lshl_add_u32 v{vA}, v{vT0}, 10, v{vA}")
        A(f"v_lshrrev_b32 v{vT0}, 4, v{vL}")
        A(f"v_lshl_add_u32 v{vA}, v{vT0}, 4, v{vA}")
        A(f"v_lshrrev_b32 v{vB}, 1, v{vL}")
        A(f"v_mul_u32_u24 v{vB}, {4*3584}, v{vB}")
        A(f"v_and_b32 v{vC}, 1, v{vL}")
        A(f"v_lshl_add_u32 v{vB}, v{vC}, 4, v{vB}")
        if self.dn2:
            A(f"v_lshlrev_b32 v{vC}, 6, v{vT0}")
            A(f"v_and_b32 v{vT0}, 3, v{vL}")
            A(f"v_lshl_add_u32 v{vC}, v{vT0}, 4, v{vC}")
            A(f"v_bfe_u32 v{vT0}, v{vL}, 2, 2")
            A(f"v_lshl_add_u32 v{vC}, v{vT0}, 12, v{vC}")
        else:
            A(f"v_lshlrev_b32 v{vC}, 12, v{vT0}")
            A(f"v_and_b32 v{vT0}, 15, v{vL}")
            A(f"v_lshl_add_u32 v{vC}, v{vT0}, 4, v{vC}")
        A(f"s_lshl_b32 s6, s{sG}, 19")
        A(f"s_lshr_b32 s7, s{sJ}, 4")
        A("s_lshl_b32 s7, s7, 18")
        A("s_add_u32 s6, s6, s7")
        A("s_lshl_b32 s7, s3, 16")
        A("s_add_u32 s6, s6, s7")
        if self.split:
            A(f"s_lshl_b32 s7, s{sCB}, 7")
        else:
            A(f"s_and_b32 s7, s{sJ}, 15")
            A("s_lshl_b32 s7, s7, 6")
        A("s_add_u32 s6, s6, s7")
        if not self.dyn:
            self.role_addr()

    def role_addr(self):
        A = self.A
        A(f"s_mul_i32 s7, s3, {128*3584}")
        A("s_lshl_b32 s8, s4, 5")
        A("s_add_u32 s7, s7, s8")
        if 'l' in self.dbg:
            A(f"v_mov_b32 v{vB}, v{vV}")
            A("s_lshl_b32 s7, s4, 14")
            A("s_lshl_b32 s8, s3, 12")
            A("s_add_u32 s7, s7, s8")
        if 'c' in self.dbg:
            A(f"v_lshrrev_b32 v{vB}, 3, v{vL}")
            A(f"v_mul_u32_u24 v{vB}, 3584, v{vB}")
            A(f"v_and_b32 v{vT0}, 7, v{vL}")
            A(f"v_lshl_add_u32 v{vB}, v{vT0}, 4, v{vB}")
            A("s_and_b32 s7, s4, 3")
            A("s_lshl_b32 s7, s7, 2")
            A("s_add_u32 s7, s7, s3")
            A(f"s_mul_i32 s7, s7, {32*3584}")
            A("s_lshr_b32 s8, s4, 2")
            A("s_lshl_b32 s8, s8, 7")
            A("s_add_u32 s7, s7, s8")
        A("s_lshl_b32 s8, s4, 14")
        A("s_lshl_b32 s9, s3, 8")
        A("s_add_u32 s8, s8, s9")

    def issue_weight(self, k):
        A = self.A
        grp, i = k >> 2, k & 3
        if grp == 0:
            A(f"s_add_u32 s{sT}, s6, {i*8192}")
            self.id_wo = self.load(f"buffer_load_dwordx4 {vr(vZ+8*i+4,4)}, v{vA}, {srd(sWO)}, s{sT} offen{'' if 'w' in self.dbg else ' nt'}")
            if self.split:
                assert self.wo_at >= 240 and self.R == 96
                self.id_wo = self.load(f"buffer_load_dwordx4 {vr(vRING+32+4*i,4)}, v{vA}, {srd(sWO)}, s{sT} offen offset:64{'' if 'w' in self.dbg else ' nt'}")
        else:
            dst = vr(vRING+32+(k-4)*4,4,'v') if self.wl in (1, 3) else vr(self.wa+(k-4)*4,4,'a')
            if grp in (1, 2):
                A(f"s_add_u32 s{sT}, s7, {i*(1024 if 'l' in self.dbg else 8*3584 if 'c' in self.dbg else 3584)}")
                self.id_w3[grp] = self.load(f"buffer_load_dwordx4 {dst}, v{vB}, {srd(sWG if grp == 1 else sWU)}, s{sT} offen{' nt' if 'n' in self.dbg else ''}")
            else:
                self.id_w3[grp] = self.load(f"buffer_load_dwordx4 {dst}, v{vC}, {srd(sWD)}, s8 offen offset:{i*1024} nt")

    def flags_issue(self):
        A = self.A
        A(f"s_mov_b32 s9, {WS_FL}")
        self.fl = [f"buffer_load_dwordx4 {vr(vE+4,4)}, v{vV}, {srd(sWS)}, s9 offen sc1"]
        self.id_fl = self.load(self.fl[0])
        if self.dyn == 2:
            A(f"v_lshlrev_b32 v{vD}, 3, v{vL}")
            if self.split:
                A(f"v_and_b32 v{vD}, 0xf8, v{vD}")
            self.fl.append(f"buffer_load_dwordx2 {vr(vE+2,2)}, v{vD}, {srd(sWS)}, s9 offen offset:{WS_KY-WS_FL} sc1")
            self.id_fl = self.load(self.fl[1])

    def flags_finish(self):
        A = self.A

        def chkf(k):
            if k == 1:
                A(f"v_cmp_ne_u32 s[{sMISS+2}:{sMISS+3}], s{sTAG}, v{vE+2}")
                return
            A(f"v_xor_b32 v{vE}, s{sTAG}, v{vE+4}")
            A(f"v_xor_b32 v{vE+1}, s{sTAG}, v{vE+5}")
            A(f"v_or_b32 v{vE}, v{vE}, v{vE+1}")
            A(f"v_xor_b32 v{vE+1}, s{sTAG}, v{vE+6}")
            A(f"v_or_b32 v{vE}, v{vE}, v{vE+1}")
            A(f"v_xor_b32 v{vE+1}, s{sTAG}, v{vE+7}")
            A(f"v_or_b32 v{vE}, v{vE}, v{vE+1}")
            A(f"v_cmp_ne_u32 s[{sMISS}:{sMISS+1}], 0, v{vE}")
        self.poll_finish(self.fl, chkf, self.id_fl)
        if self.dyn == 2:
            A(f"v_readfirstlane_b32 s{sU0}, v{vE+3}")
            A(f"s_sub_u32 s{sU0}, 0x2000000, s{sU0}")
            A(f"v_add_u32 v{vE+3}, s{sU0}, v{vE+3}")
            A(f"v_lshl_add_u32 v{vE+3}, v{vE+3}, 6, v{vL}")
            A(f"v_readlane_b32 s{sU0}, v{vE+3}, s{sRL}")
            A(f"v_cmp_gt_u32 vcc, s{sU0}, v{vE+3}")
            A(f"s_bcnt1_i32_b{'32 s5, vcc_lo' if self.split else '64 s5, vcc'}")
            A("s_lshl_b32 s5, s5, 2")
            A("s_add_u32 s4, s4, s5")
            if self.split:
                A(f"s_lshl_b32 s5, s{sS2}, 8")
                A("s_add_u32 s4, s4, s5")
            self.role_set()
            self.role_addr()
            self.role_known = True

    def tail(self):
        A = self.A
        self.stamp("vdone")
        t = vAT
        ad = vE + 2
        A(f"v_and_b32 v{ad}, 3, v{vL}")
        A(f"v_lshrrev_b32 v{vT0}, 4, v{vL}")
        A(f"v_lshl_add_u32 v{ad}, v{ad}, 2, v{vT0}")
        A(f"v_mul_u32_u24 v{ad}, 144, v{ad}")
        A(f"s_mul_i32 s{sU0}, s3, 2304")
        A(f"v_add_u32 v{ad}, s{sU0}, v{ad}")
        rd = vE + 3
        A(f"s_and_b32 s{sU1}, s3, 1")
        A(f"s_mul_i32 s{sU0}, s{sU1}, {8*144}")
        A(f"v_lshrrev_b32 v{rd}, 3, v{vL}")
        A(f"v_mul_u32_u24 v{rd}, 144, v{rd}")
        A(f"v_and_b32 v{vT0}, 7, v{vL}")
        A(f"v_lshl_add_u32 v{rd}, v{vT0}, 4, v{rd}")
        A(f"v_add_u32 v{rd}, s{sU0}, v{rd}")
        A("s_mov_b32 exec_lo, 0x000f000f")
        A("s_mov_b32 exec_hi, 0x000f000f")
        for e in range(8):
            A(f"ds_write_b128 v{ad}, {vr(vACC+4*e,4)} offset:{L_OP+16*e}")
        A("s_mov_b64 exec, -1")
        A(f"s_lshl_b32 s{sU0}, s{sG}, 16")
        A(f"s_add_u32 s{sU2}, s{sU0}, {WS_O1}")
        A(f"s_lshl_b32 s{sU0}, s{sJ}, 11")
        A(f"s_add_u32 s{sU0}, s{sU0}, s{sU2}")
        A(f"s_lshl_b32 s{sU1}, s{sU1}, 10")
        A(f"s_add_u32 s{sU0}, s{sU0}, s{sU1}")
        A("s_waitcnt lgkmcnt(0)")
        A("s_barrier")
        skip = self.lab("Lo")
        A("s_cmp_gt_u32 s3, 1")
        A(f"s_cbranch_scc1 {skip}")
        for wv in range(4):
            A(f"ds_read_b128 {vr(t+4*wv,4)}, v{rd} offset:{L_OP+2304*wv}")
        A("s_waitcnt lgkmcnt(2)")
        A(f"v_pk_add_f32 {vr(t,2)}, {vr(t,2)}, {vr(t+4,2)}")
        A(f"v_pk_add_f32 {vr(t+2,2)}, {vr(t+2,2)}, {vr(t+6,2)}")
        A("s_waitcnt lgkmcnt(0)")
        A(f"v_pk_add_f32 {vr(t+8,2)}, {vr(t+8,2)}, {vr(t+12,2)}")
        A(f"v_pk_add_f32 {vr(t+10,2)}, {vr(t+10,2)}, {vr(t+14,2)}")
        A(f"v_pk_add_f32 {vr(vBS,2)}, {vr(t,2)}, {vr(t+8,2)}")
        A(f"v_pk_add_f32 {vr(vBS+2,2)}, {vr(t+2,2)}, {vr(t+10,2)}")
        A(f"s_mov_b32 s{sWQO}, s{sU0}")
        if self.loc:
            glob = self.lab("Lg")
            A(f"s_cmp_eq_u32 s{sLOC}, 0")
            A(f"s_cbranch_scc1 {glob}")
            A(f"buffer_store_dwordx4 {vr(vBS,4)}, v{vV}, {srd(sWS)}, s{sU0} offen")
            A(f"s_branch {skip}")
            A(f"{glob}:")
        A(f"buffer_store_dwordx4 {vr(vBS,4)}, v{vV}, {srd(sWS)}, s{sU0} offen sc1")
        A(f"{skip}:")
        self.stamp("opub")
        if self.split:
            A(f"s_cmp_eq_u32 s{sS2}, 0")
            A("s_cbranch_scc1 L_s3")
            sv = (self.nload, self.done)
        pa = vE + 2
        A(f"v_lshrrev_b32 v{pa}, 4, v{vL}")
        A(f"v_lshlrev_b32 v{pa}, 11, v{pa}")
        A(f"v_and_b32 v{vT0}, 15, v{vL}")
        A(f"v_lshl_add_u32 v{pa}, v{vT0}, 4, v{pa}")
        A(f"s_lshr_b32 s{sU0}, s{sJ}, 4")
        A(f"s_lshl_b32 s{sU0}, s{sU0}, 10")
        A(f"s_add_u32 s{sU2}, s{sU2}, s{sU0}")
        A(f"s_lshl_b32 s{sU0}, s3, 8")
        A(f"s_add_u32 s{sU2}, s{sU2}, s{sU0}")
        for k in range(8):
            A(f"s_add_u32 s{10+k}, s{sU2}, {k*8192}")
        pb = vRING
        loads = [f"buffer_load_dwordx4 {vr(pb+4*k,4)}, v{pa}, {srd(sWS)}, s{10+k} offen sc1" for k in range(8)]
        pid = self.poll_issue(loads)[-1]
        if self.dyn == 1:
            self.role_poll_finish()
        if self.wl == 1:
            for k in range(4, 16):
                self.issue_weight(k)
        if self.split:
            A(f"v_bfe_u32 v{vE+3}, v{vL}, 3, 1")
            A(f"v_lshlrev_b32 v{vE+3}, 7, v{vE+3}")
            A(f"v_lshrrev_b32 v{vT0}, 4, v{vL}")
            A(f"v_lshl_add_u32 v{vE+3}, v{vT0}, 5, v{vE+3}")
            A(f"v_bfe_u32 v{vT0}, v{vL}, 2, 1")
            A(f"v_lshl_add_u32 v{vE+3}, v{vT0}, 4, v{vE+3}")
            A(f"v_add_u32 v{vE+3}, s{sU0}, v{vE+3}")
        self.wait(self.id_wo)
        w2 = vACC
        self.perm_pairs(w2, vZ + 4, vZ + 12)
        self.perm_pairs(w2 + 8, vZ + 20, vZ + 28)
        if self.split:
            self.perm_pairs(w2 + 16, vRING + 32, vRING + 36)
            self.perm_pairs(w2 + 24, vRING + 40, vRING + 44)
        self.poll_finish(loads, self.check_sentinel(pb), pid)
        self.stamp("hop1")
        for step in (4, 2, 1):
            for k in range(step):
                for h in (0, 2):
                    A(f"v_pk_add_f32 {vr(pb+4*k+h,2)}, {vr(pb+4*k+h,2)}, {vr(pb+4*(k+step)+h,2)}")
        self.tswap(32, [(pb, pb + 2), (pb + 1, pb + 3)])
        A(f"v_mov_b32 v{pb+2}, v{pb}")
        A(f"v_mov_b32 v{pb+3}, v{pb+1}")
        self.tswap(16, [(pb, pb + 2), (pb + 1, pb + 3)])
        A(f"v_cvt_pk_bf16_f32 v{pb}, v{pb}, v{pb+1}")
        A(f"v_mov_b32 v{pb+1}, v{pb}")
        A(f"v_permlane32_swap_b32 v{pb}, v{pb+1}")
        if self.split:
            acc = pb + 4
            for hf in range(2):
                for c in range(8):
                    A(f"v_dot2_f32_bf16 v{acc+8*hf+c}, v{w2+16*hf+c}, v{pb}, 0")
            for hf in range(2):
                for c in range(8):
                    A(f"v_dot2_f32_bf16 v{acc+8*hf+c}, v{w2+16*hf+8+c}, v{pb+1}, v{acc+8*hf+c}")
            r1 = acc + 16
            for c in range(8):
                self.dpp("v_add_f32", r1 + c, acc + c, acc + c, "row_ror:8", bank=0x3)
                self.dpp("v_add_f32", r1 + c, acc + c + 8, acc + c + 8, "row_ror:8", bank=0xc)
            r2 = r1 + 8
            for c in range(4):
                self.dpp("v_add_f32", r2 + c, r1 + c, r1 + c, "row_ror:12", bank=0x5)
                self.dpp("v_add_f32", r2 + c, r1 + c + 4, r1 + c + 4, "row_ror:4", bank=0xa)
            for q in ("quad_perm:[1,0,3,2]", "quad_perm:[2,3,0,1]"):
                for c in range(4):
                    self.dpp("v_add_f32", r2 + c, r2 + c, r2 + c, q)
            A("s_mov_b32 exec_lo, 0x11111111")
            A("s_mov_b32 exec_hi, 0x11111111")
            A(f"ds_write_b128 v{vE+3}, {vr(r2,4)} offset:{L_S2}")
        else:
            acc = pb + 4
            for c in range(8):
                A(f"v_dot2_f32_bf16 v{acc+c}, v{w2+c}, v{pb}, 0")
            for c in range(8):
                A(f"v_dot2_f32_bf16 v{acc+c}, v{w2+8+c}, v{pb+1}, v{acc+c}")
            r1 = acc + 8
            for c in range(4):
                self.dpp("v_add_f32", r1 + c, acc + c, acc + c, "row_ror:8", bank=0x3)
                self.dpp("v_add_f32", r1 + c, acc + c + 4, acc + c + 4, "row_ror:8", bank=0xc)
            r2 = r1 + 4
            for c in range(2):
                self.dpp("v_add_f32", r2 + c, r1 + c, r1 + c, "row_ror:12", bank=0x5)
                self.dpp("v_add_f32", r2 + c, r1 + c + 2, r1 + c + 2, "row_ror:4", bank=0xa)
            for q in ("quad_perm:[1,0,3,2]", "quad_perm:[2,3,0,1]"):
                for c in range(2):
                    self.dpp("v_add_f32", r2 + c, r2 + c, r2 + c, q)
            A(f"v_lshlrev_b32 v{vT0}, 1, v{vL}")
            A(f"s_lshl_b32 s{sU0}, s3, 7")
            A(f"v_add_u32 v{vT0}, s{sU0}, v{vT0}")
            A("s_mov_b32 exec_lo, 0x11111111")
            A("s_mov_b32 exec_hi, 0x11111111")
            A(f"ds_write_b64 v{vT0}, {vr(r2,2)} offset:{L_S2}")
        A("s_mov_b64 exec, -1")
        A("s_waitcnt lgkmcnt(0)")
        A("s_barrier")
        skip = self.lab("La")
        A("s_cmp_lg_u32 s3, 0")
        A(f"s_cbranch_scc1 {skip}")
        A(f"s_mov_b64 exec, {'0xffff' if self.split else '0xff'}")
        for wv in range(4):
            A(f"ds_read_b128 {vr(t+4*wv,4)}, v{vV} offset:{L_S2+(256 if self.split else 128)*wv}")
        A("s_waitcnt lgkmcnt(2)")
        A(f"v_pk_add_f32 {vr(t,2)}, {vr(t,2)}, {vr(t+4,2)}")
        A(f"v_pk_add_f32 {vr(t+2,2)}, {vr(t+2,2)}, {vr(t+6,2)}")
        A("s_waitcnt lgkmcnt(0)")
        A(f"v_pk_add_f32 {vr(t+8,2)}, {vr(t+8,2)}, {vr(t+12,2)}")
        A(f"v_pk_add_f32 {vr(t+10,2)}, {vr(t+10,2)}, {vr(t+14,2)}")
        A(f"v_pk_add_f32 {vr(t,2)}, {vr(t,2)}, {vr(t+8,2)}")
        A(f"v_pk_add_f32 {vr(t+2,2)}, {vr(t+2,2)}, {vr(t+10,2)}")
        A(f"buffer_store_dwordx4 {vr(t,4)}, v{vV}, {srd(sWS)}, s{sP} offen sc1")
        A("s_mov_b64 exec, -1")
        A(f"{skip}:")
        if self.cln == 1:
            skip = self.lab("Lc")
            A("s_cmp_gt_u32 s3, 1")
            A(f"s_cbranch_scc1 {skip}")
            A(f"buffer_store_dwordx4 {vr(vBS,4)}, v{vV}, {srd(sWS)}, s{sWQO} offen sc1")
            A(f"{skip}:")
        if self.cln == 2:
            skip = self.lab("Lc")
            A(f"s_and_b32 s{sU0}, s{sJ}, 15")
            A(f"s_lshl_b32 s{sU0}, s{sU0}, 2")
            A(f"s_add_u32 s{sU0}, s{sU0}, s3")
            A(f"s_cmp_lg_u32 s{sU0}, 3")
            A(f"s_cbranch_scc1 {skip}")
            A("buffer_wbl2 sc1")
            A(f"{skip}:")
        self.stamp("apub")
        if self.split:
            A("s_branch L_fin")
            A("L_s3:")
            self.nload, self.done = sv
        A("s_cmp_eq_u32 s5, 0")
        A(f"s_cbranch_scc1 {'L_cln' if self.cln == 3 else 'L_fin'}")
        vW = vRING + 80
        if self.sbar:
            A("s_barrier")
        if self.wl == 3:
            for k in range(4, 12 if self.dlate else 16):
                self.issue_weight(k)
        A(f"v_lshrrev_b32 v{pa}, 5, v{vL}")
        A(f"v_lshlrev_b32 v{pa}, 11, v{pa}")
        A(f"v_and_b32 v{vT0}, 31, v{vL}")
        A(f"v_lshl_add_u32 v{pa}, v{vT0}, 4, v{pa}")
        A(f"s_lshl_b32 s{sU0}, s3, 9")
        for k in range(8):
            A(f"s_add_u32 s{10+k}, s{sU0}, {WS_A2 + k*4096}")
        pid2 = self.poll_issue(loads)[-1]
        if self.dlate:
            for k in range(12, 16):
                self.issue_weight(k)
        for m in range(2 if self.dlate else 3):
            self.wait(self.id_w3[m + 1])
            if 'S' in self.dbg:
                self.stamp("w%d" % m)
            if self.wl in (1, 3):
                src = vRING + 32 + 16 * m
            else:
                src = vRD
                for i in range(16):
                    A(f"v_accvgpr_read_b32 v{vRD+i}, a{self.wa+16*m+i}")
            self.perm_pairs(vW + 16 * m, src, src + 4)
            self.perm_pairs(vW + 16 * m + 8, src + 8, src + 12)
        x0, x1, hadr, radr, gadr = vE + 4, vE + 5, vE + 6, vE + 7, vE + 3
        A(f"v_lshlrev_b32 v{x0}, 16, v{vX3}")
        A(f"v_and_b32 v{x1}, 0xffff0000, v{vX3}")
        A(f"v_lshlrev_b32 v{hadr}, 3, v{vT0}")
        A(f"v_lshrrev_b32 v{vT0}, 5, v{vL}")
        A(f"v_lshl_add_u32 v{hadr}, v{vT0}, 2, v{hadr}")
        A(f"s_lshl_b32 s{sU0}, s3, 8")
        A(f"v_add_u32 v{hadr}, s{sU0}, v{hadr}")
        A(f"v_lshrrev_b32 v{radr}, 1, v{vL}")
        A(f"v_lshlrev_b32 v{radr}, 3, v{radr}")
        A(f"v_add_u32 v{radr}, s{sU0}, v{radr}")
        A(f"v_lshrrev_b32 v{gadr}, 5, v{vL}")
        A(f"v_lshlrev_b32 v{gadr}, 8, v{gadr}")
        A(f"v_and_b32 v{vT0}, 1, v{vL}")
        A(f"v_lshl_add_u32 v{gadr}, v{vT0}, 7, v{gadr}")
        A(f"v_bfe_u32 v{vT0}, v{vL}, 4, 1")
        A(f"v_lshl_add_u32 v{gadr}, v{vT0}, 6, v{gadr}")
        A(f"s_lshl_b32 s{sU0}, s3, 2")
        A(f"v_add_u32 v{gadr}, s{sU0}, v{gadr}")
        self.poll_finish(loads, self.check_sentinel(pb), pid2 if self.dlate else None)
        self.stamp("hop2")
        if self.cln == 3 or (self.split and self.cln == 1 and not self.clnp):
            skip = self.lab("Lc")
            A("s_cmp_gt_u32 s3, 1")
            A(f"s_cbranch_scc1 {skip}")
            A(f"buffer_store_dwordx4 {vr(vBS,4)}, v{vV}, {srd(sWS)}, s{sWQO} offen sc1")
            A(f"{skip}:")
        for step in (4, 2, 1):
            for k in range(step):
                for h in (0, 2):
                    A(f"v_pk_add_f32 {vr(pb+4*k+h,2)}, {vr(pb+4*k+h,2)}, {vr(pb+4*(k+step)+h,2)}")
        self.tswap(32, [(pb, pb + 2), (pb + 1, pb + 3)])
        h0, h1, s1, s2, hp = pb, pb + 1, pb + 4, pb + 5, pb + 6
        self.rnd(h0, h0)
        self.rnd(h1, h1)
        A(f"v_add_f32 v{h0}, v{h0}, v{x0}")
        A(f"v_add_f32 v{h1}, v{h1}, v{x1}")
        A(f"v_cvt_pk_bf16_f32 v{hp}, v{h0}, v{h1}")
        A(f"v_lshlrev_b32 v{h0}, 16, v{hp}")
        A(f"v_and_b32 v{h1}, 0xffff0000, v{hp}")
        A(f"ds_write_b32 v{hadr}, v{hp} offset:{L_H}")
        A(f"v_add_f32 v{s1}, v{h0}, v{h1}")
        A(f"v_mul_f32 v{s2}, v{h0}, v{h0}")
        A(f"v_fmac_f32 v{s2}, v{h1}, v{h1}")
        for c in ("row_ror:8", "row_ror:4", "row_ror:2", "row_ror:1"):
            for r in (s1, s2):
                self.dpp("v_add_f32", r, r, r, c)
        for r in (s1, s2):
            self.dpp("v_add_f32", r, r, r, "row_bcast:15", row=0xa)
        for r in (s1, s2):
            self.dpp("v_add_f32", r, r, r, "row_bcast:31", row=0xc)
        A(f"s_lshl_b32 s{sU0}, s3, 3")
        A(f"v_mov_b32 v{vT0}, s{sU0}")
        A(f"v_mov_b32 v{pb+7}, 0")
        A("s_mov_b32 exec_lo, 0")
        A("s_mov_b32 exec_hi, 0x80000000")
        A(f"ds_write_b64 v{vT0}, {vr(s1,2)} offset:{L_LNS}")
        A("s_mov_b64 exec, -1")
        A("s_waitcnt lgkmcnt(0)")
        A("s_barrier")
        q = pb + 8
        A(f"ds_read_b128 {vr(q,4)}, v{pb+7} offset:{L_LNS}")
        A(f"ds_read_b128 {vr(q+4,4)}, v{pb+7} offset:{L_LNS+16}")
        A("s_waitcnt lgkmcnt(0)")
        A(f"v_pk_add_f32 {vr(q,2)}, {vr(q,2)}, {vr(q+2,2)}")
        A(f"v_pk_add_f32 {vr(q+4,2)}, {vr(q+4,2)}, {vr(q+6,2)}")
        A(f"v_pk_add_f32 {vr(q,2)}, {vr(q,2)}, {vr(q+4,2)}")
        mean, var, mb, rs = q, q + 1, q + 2, q + 3
        A(f"v_mul_f32 v{mean}, 0x3b000000, v{mean}")
        A(f"v_mul_f32 v{var}, 0x3b000000, v{var}")
        A(f"v_fma_f32 v{var}, -v{mean}, v{mean}, v{var}")
        self.ln_scalars(mean, var, mb, rs)
        self.norm_pair(hp, h0, h1, mb, rs)
        A(f"ds_write_b32 v{hadr}, v{hp} offset:{L_HN}")
        A(f"ds_read_b64 {vr(q+4,2)}, v{radr} offset:{L_HN}")
        A("s_waitcnt lgkmcnt(0)")
        hn = q + 4
        acc = pb + 16
        for m in range(2):
            for c in range(8):
                A(f"v_dot2_f32_bf16 v{acc+8*m+c}, v{vW+16*m+c}, v{hn}, 0")
        for m in range(2):
            for c in range(8):
                A(f"v_dot2_f32_bf16 v{acc+8*m+c}, v{vW+16*m+8+c}, v{hn+1}, v{acc+8*m+c}")
        self.tswap(32, [(acc + c, acc + 8 + c) for c in range(8)])
        self.tswap(16, [(acc + c, acc + 4 + c) for c in range(4)])
        for c in ("row_ror:4", "row_ror:8", "quad_perm:[2,3,0,1]"):
            for r in range(4):
                self.dpp("v_add_f32", acc + r, acc + r, acc + r, c)
        A("s_mov_b32 exec_lo, 0x00030003")
        A("s_mov_b32 exec_hi, 0x00030003")
        for r in range(4):
            A(f"ds_write_b32 v{gadr}, v{acc+r} offset:{L_GU+16*r}")
        A("s_mov_b64 exec, -1")
        A(f"v_and_b32 v{vT0}, 0xf0, v{vV}")
        if self.dn2:
            A(f"v_lshrrev_b32 v{gadr}, 4, v{vL}")
            A(f"v_lshlrev_b32 v{gadr}, 7, v{gadr}")
            A(f"v_and_b32 v{x0}, 3, v{vL}")
            A(f"v_lshl_add_u32 v{gadr}, v{x0}, 5, v{gadr}")
            A(f"v_bfe_u32 v{x0}, v{vL}, 2, 2")
            A(f"v_lshl_add_u32 v{gadr}, v{x0}, 3, v{gadr}")
        else:
            A(f"v_lshrrev_b32 v{radr}, 4, v{vL}")
            A(f"v_lshlrev_b32 v{radr}, 3, v{radr}")
            A(f"s_lshl_b32 s{sU0}, s3, 5")
            A(f"v_add_u32 v{radr}, s{sU0}, v{radr}")
            A(f"v_lshlrev_b32 v{hadr}, 1, v{vL}")
            A(f"v_add_u32 v{hadr}, s{sU0}, v{hadr}")
            A(f"v_lshlrev_b32 v{gadr}, 1, v{vT0}")
            A(f"v_lshrrev_b32 v{x0}, 5, v{vL}")
            A(f"v_lshl_add_u32 v{gadr}, v{x0}, 4, v{gadr}")
            A(f"v_bfe_u32 v{x0}, v{vL}, 4, 1")
            A(f"v_lshl_add_u32 v{gadr}, v{x0}, 3, v{gadr}")
        A(f"s_lshl_b32 s{sU1}, s4, 11")
        A(f"s_lshl_b32 s{sU0}, s3, 9")
        A(f"s_add_u32 s{sU1}, s{sU1}, s{sU0}")
        A(f"s_add_u32 s{sU1}, s{sU1}, {WS_A3}")
        A("s_waitcnt lgkmcnt(0)")
        A("s_barrier")
        A(f"ds_read_b128 {vr(q,4)}, v{vT0} offset:{L_GU}")
        A(f"ds_read_b128 {vr(q+4,4)}, v{vT0} offset:{L_GU+256}")
        if self.dlate:
            assert self.wl == 3
            A("s_waitcnt vmcnt(0)")
            self.perm_pairs(vW + 32, vRING + 64, vRING + 68)
            self.perm_pairs(vW + 40, vRING + 72, vRING + 76)
        A("s_waitcnt lgkmcnt(0)")
        A(f"v_pk_add_f32 {vr(q,2)}, {vr(q,2)}, {vr(q+2,2)}")
        A(f"v_pk_add_f32 {vr(q+4,2)}, {vr(q+4,2)}, {vr(q+6,2)}")
        A(f"v_add_f32 v{q}, v{q}, v{q+1}")
        A(f"v_add_f32 v{q+4}, v{q+4}, v{q+5}")
        self.rnd(q, q)
        self.rnd(q + 4, q + 4)
        A(f"v_max_f32 v{q}, 0, v{q}")
        A(f"v_mul_f32 v{q}, v{q}, v{q+4}")
        if self.dn2:
            A(f"v_cvt_pk_bf16_f32 v{q+1}, v{q}, 0")
            A(f"v_cvt_pk_bf16_f32 v{q}, 0, v{q}")
            A(f"v_mov_b32_dpp v{q+4}, v{q+1} quad_perm:[0,0,0,0] row_mask:0xf bank_mask:0xf")
            A(f"v_mov_b32_dpp v{q+5}, v{q+1} quad_perm:[2,2,2,2] row_mask:0xf bank_mask:0xf")
            self.dpp("v_or_b32", q + 4, q, q + 4, "quad_perm:[1,1,1,1]")
            self.dpp("v_or_b32", q + 5, q, q + 5, "quad_perm:[3,3,3,3]")
            for c in range(8):
                A(f"v_dot2_f32_bf16 v{acc+c}, v{vW+32+c}, v{q+4}, 0")
            for c in range(8):
                A(f"v_dot2_f32_bf16 v{acc+c}, v{vW+40+c}, v{q+5}, v{acc+c}")
            r1 = acc + 8
            for c in range(4):
                self.dpp("v_add_f32", r1 + c, acc + c, acc + c, "row_ror:8", bank=0x3)
                self.dpp("v_add_f32", r1 + c, acc + c + 4, acc + c + 4, "row_ror:8", bank=0xc)
            r2 = r1 + 4
            for c in range(2):
                self.dpp("v_add_f32", r2 + c, r1 + c, r1 + c, "row_ror:12", bank=0x5)
                self.dpp("v_add_f32", r2 + c, r1 + c + 2, r1 + c + 2, "row_ror:4", bank=0xa)
            A(f"buffer_store_dwordx2 {vr(r2,2)}, v{gadr}, {srd(sWS)}, s{sU1} offen sc1")
        else:
            A(f"v_cvt_pk_bf16_f32 v{q}, v{q}, v{q}")
            A("s_mov_b64 exec, 0xffff")
            A(f"ds_write_b16 v{hadr}, v{q} offset:{L_F}")
            A("s_mov_b64 exec, -1")
            A(f"ds_read_b64 {vr(q+4,2)}, v{radr} offset:{L_F}")
            A("s_waitcnt lgkmcnt(0)")
            for c in range(8):
                A(f"v_dot2_f32_bf16 v{acc+c}, v{vW+32+c}, v{q+4}, 0")
            for c in range(8):
                A(f"v_dot2_f32_bf16 v{acc+c}, v{vW+40+c}, v{q+5}, v{acc+c}")
            self.tswap(32, [(acc + c, acc + 4 + c) for c in range(4)])
            self.tswap(16, [(acc + c, acc + 2 + c) for c in range(2)])
            A(f"buffer_store_dwordx2 {vr(acc,2)}, v{gadr}, {srd(sWS)}, s{sU1} offen sc1")
        self.stamp("dpub")
        A("s_lshl_b32 s9, s3, 8")
        A("s_add_u32 s9, s9, s4")
        A("s_cmp_ge_u32 s9, 32")
        A(f"s_cbranch_scc1 {'L_cln' if self.clnp else 'L_fin'}")
        A(f"v_lshrrev_b32 v{pa}, 2, v{vL}")
        A(f"v_lshlrev_b32 v{pa}, 11, v{pa}")
        A(f"v_and_b32 v{vT0}, 3, v{vL}")
        A(f"v_lshl_add_u32 v{pa}, v{vT0}, 4, v{pa}")
        A(f"s_lshl_b32 s{sU0}, s4, 6")
        for k in range(7):
            A(f"s_add_u32 s{10+k}, s{sU0}, {WS_A3 + k*32768}")
        self.poll_issue(loads[:7])
        A(f"v_lshlrev_b32 v{x0}, 3, v{vT0}")
        A(f"v_lshrrev_b32 v{x1}, 5, v{vL}")
        A(f"v_lshl_add_u32 v{x0}, v{x1}, 2, v{x0}")
        A(f"v_bfe_u32 v{x1}, v{vL}, 4, 1")
        A(f"v_lshl_add_u32 v{x0}, v{x1}, 1, v{x0}")
        A(f"s_lshl_b32 s{sU0}, s4, 5")
        A(f"v_add_u32 v{x0}, s{sU0}, v{x0}")
        A(f"ds_read_u16 v{x1}, v{x0} offset:{L_H}")
        A(f"v_mov_b32 v{hadr}, s{sE}")
        A("s_waitcnt lgkmcnt(0)")
        A(f"v_lshlrev_b32 v{x1}, 16, v{x1}")
        self.poll_finish(loads[:7], self.check_sentinel(pb))
        self.stamp("hop3")
        for (a_, b_) in ((0, 4), (1, 5), (2, 6), (0, 2), (1, 3), (0, 1)):
            for h in (0, 2):
                A(f"v_pk_add_f32 {vr(pb+4*a_+h,2)}, {vr(pb+4*a_+h,2)}, {vr(pb+4*b_+h,2)}")
        self.tswap(32, [(pb, pb + 2), (pb + 1, pb + 3)])
        self.tswap(16, [(pb, pb + 1)])
        self.dpp("v_add_f32", pb, pb, pb, "row_ror:4")
        self.dpp("v_add_f32", pb, pb, pb, "row_ror:8")
        self.rnd(pb, pb)
        A(f"v_add_f32 v{pb}, v{pb}, v{x1}")
        A(f"v_cvt_pk_bf16_f32 v{pb}, v{pb}, v{pb}")
        A("s_mov_b32 exec_lo, 0x000f000f")
        A("s_mov_b32 exec_hi, 0x000f000f")
        A(f"buffer_store_short v{pb}, v{x0}, {srd(sOUT)}, 0 offen{self.osc}")
        if self.clnp:
            A("s_mov_b64 exec, -1")
            A(f"buffer_store_dwordx4 {vr(vBS,4)}, v{vV}, {srd(sWS)}, s{sWQO} offen sc1")
        A("s_cmp_lg_u32 s4, 0")
        A("s_cbranch_scc1 L_fin")
        A("s_mov_b64 exec, 1")
        A(f"buffer_store_dword v{hadr}, v{vV}, {srd(sWS)}, 0 offen sc1")
        if self.amp:
            self.stamp("fin")
            A(f"v_readlane_b32 s98, v{vST}, 0")
            A(f"v_readlane_b32 s99, v{vST}, 1")
            A("s_sub_u32 s98, s99, s98")
            A(f"s_sub_i32 s98, s98, {self.amp[1]}")
            A("s_max_i32 s98, s98, 0")
            A("s_min_i32 s98, s98, 3000")
            A("s_mul_i32 s98, s98, 10")
            self.delay("s98")
        if self.cln == 3 or self.clnp:
            A("s_branch L_fin")
            A("L_cln:")
            A("s_cmp_gt_u32 s3, 1")
            A("s_cbranch_scc1 L_fin")
            if self.cslp:
                A(f"s_sleep {self.cslp}")
            A(f"buffer_store_dwordx4 {vr(vBS,4)}, v{vV}, {srd(sWS)}, s{sWQO} offen sc1")
        A("L_fin:")
        A("s_mov_b64 exec, -1")
        if self.stamps:
            self.stamp("end")
            A(f"s_getreg_b32 s{sU0}, hwreg(HW_REG_XCC_ID)")
            A(f"v_writelane_b32 v{vST}, s{sU0}, 63")
            A(f"s_lshl_b32 s{sU0}, s2, 10")
            A(f"s_lshl_b32 s{sU1}, s3, 8")
            A(f"s_add_u32 s{sU0}, s{sU0}, s{sU1}")
            A(f"s_add_u32 s{sU0}, s{sU0}, {WS_STAMP}")
            A(f"v_lshlrev_b32 v{vT0}, 2, v{vL}")
            A(f"buffer_store_dword v{vST}, v{vT0}, {srd(sWS)}, s{sU0} offen")
        if 'E' in self.dbg:
            A("s_endpgm")
        A("L_end:")
        if 'E' in self.dbg:
            self.delay(10000)
        A("s_endpgm")

    def delay(self, ticks, skipreg=None):
        A = self.A
        lp, dn = self.lab("Ld"), self.lab("Le")
        if skipreg:
            A(f"s_cmp_lg_u32 {skipreg}, 0")
            A(f"s_cbranch_scc1 {dn}")
        A("s_memrealtime s[100:101]")
        A("s_waitcnt lgkmcnt(0)")
        A(f"{lp}:")
        A("s_memrealtime vcc")
        A("s_waitcnt lgkmcnt(0)")
        A("s_sub_u32 vcc_lo, vcc_lo, s100")
        A(f"s_cmp_lt_u32 vcc_lo, {ticks}")
        A(f"s_cbranch_scc1 {lp}")
        A(f"{dn}:")

    def pace_wait(self, n):
        if not self.pace or n < self.pace_from or n > self.pace_to:
            return
        A = self.A
        lim = int(round(self.pace0 + n * self.pace))
        lp, go = self.lab("Lw"), self.lab("Lw")
        A(f"{lp}:")
        A("s_memrealtime vcc")
        A("s_waitcnt lgkmcnt(0)")
        A(f"s_sub_u32 vcc_lo, vcc_lo, s{sT0}")
        A(f"s_cmp_ge_u32 vcc_lo, {lim}")
        A(f"s_cbranch_scc1 {go}")
        A("s_sleep 2")
        A(f"s_branch {lp}")
        A(f"{go}:")

    def body(self):
        R, G = self.R, 8
        N = 256
        self.prologue()
        self.stamp("start")
        ids = {}
        st = dict(cons=0, q=False, s=False, w=False)
        hooks = {}
        for at, fn in ((self.W0, self.prologue2), (self.qat, self.qphase), (self.pq, self.qpoll_issue),
                       (128 + self.ps, self.spoll_issue), (self.prep_at, self.weights_prep_addr), (self.fl_at, self.flags_issue)):
            hooks.setdefault(at, []).append(fn)
        if self.dyn == 1:
            hooks.setdefault(256, []).append(self.role_poll_issue)
        if self.wl == 4:
            assert self.R <= 84 and not self.dyn
            for k, at in enumerate(self.wpos):
                assert at >= self.prep_at
                hooks.setdefault(at, []).append(lambda k=k: self.issue_weight(k + 4))
        for i in range(4):
            if self.wqs[i]:
                hooks.setdefault(self.wqs[i], []).insert(0, (lambda i=i: self.issue_wq(i)))

        def consume_one():
            cons = st["cons"]
            if not st["q"]:
                self.qpoll_finish()
                st["q"] = True
            if cons >= 128 and not st["s"]:
                self.spoll_finish()
                st["s"] = True
            if cons == self.fl_chk:
                self.flags_finish()
                if self.dyn == 1:
                    self.role_ticket()
            if self.dyn == 1 and cons == self.rl_pub:
                self.role_publish()
            if self.wl and cons == self.wo_at:
                for k in range(4):
                    self.issue_weight(k)
            if self.wl == 2 and self.wat2 and cons == self.wat2:
                assert self.role_known and not st["w"]
                for k in range(4, 16):
                    self.issue_weight(k)
                st["w"] = True
            n = cons + G
            self.wait(ids[n - 1])
            if cons < 128:
                for i in range(cons, n):
                    self.consume_k(i)
            else:
                self.consume_v_group((cons - 128) // 8)
            st["cons"] = n
            if n == 128:
                self.stats_publish()

        def window(issued):
            if issued < self.W0:
                return 1 << 20
            return self.W if issued < self.Wat else self.W2

        issued = 0
        while issued < N:
            while issued + G - R > st["cons"]:
                consume_one()
            for i0 in range(issued, issued + G, self.ig):
                w = window(i0)
                if self.ctl and i0 >= self.ctl["frm"]:
                    c = self.ctl
                    tau = c["a"] + c["b"] * i0 / 8
                    go = self.lab("Lk")
                    self.A("s_memrealtime vcc")
                    for lv, w in enumerate(c["W"]):
                        tid = ids[i0 - (w - self.ig) - 1]
                        if lv == 0:
                            self.wait(tid)
                            self.A("s_waitcnt lgkmcnt(0)")
                            self.A(f"s_sub_u32 s{sT}, vcc_lo, s{sT0}")
                        else:
                            self.A(f"s_cmp_gt_u32 s{sT}, {int(round(tau + c['th'][lv-1]))}")
                            self.A(f"s_cbranch_scc1 {go}")
                            if tid > self.done:
                                self.A(f"s_waitcnt vmcnt({self.nload - tid})")
                    self.A(f"{go}:")
                elif i0 - (w - self.ig) > 0:
                    self.wait(ids[i0 - (w - self.ig) - 1])
                self.pace_wait(i0 / G)
                if i0 in self.bars:
                    self.A("s_barrier")
                for i in range(i0, i0 + self.ig):
                    ids[i] = self.issue_stream(i)
            issued += G
            for h in hooks.get(issued, []):
                h()
            if not self.wl and not st["w"] and st["s"] and st["cons"] >= 176 and issued >= self.wat:
                for k in range(16):
                    self.issue_weight(k)
                st["w"] = True
            if issued == 256 and 256 in self.bars:
                self.A("s_barrier")
            if self.wl == 2 and not self.wat2 and not st["w"] and self.role_known and st["cons"] >= 176 and issued >= self.wat:
                for k in range(4, 16):
                    self.issue_weight(k)
                st["w"] = True
            k = 0
            while k < self.slope and st["cons"] + G <= issued and ids[st["cons"] + G - 1] <= self.done:
                if not st["q"] and issued < self.holdq:
                    break
                if st["cons"] == 128 and not st["s"] and issued < min(128 + self.holds, N):
                    break
                consume_one()
                k += 1
        while st["cons"] < N:
            consume_one()
            if not self.wl and not st["w"] and st["cons"] >= 176:
                for k in range(16):
                    self.issue_weight(k)
                st["w"] = True
        assert self.wl != 2 or st["w"]
        if self.wl and self.wo_at >= 256:
            for k in range(4):
                self.issue_weight(k)
        self.tail()

    def text(self):
        self.body()
        lines, nn = asmlib.pad(self.L)
        hdr = [
            "; Fused pre-LN GQA decode block + ReGLU MLP, one persistent launch (generated by work/gen.py).",
            f"; @launch grid=(256,1,1) block=(256,1,1) lds={LDS_BYTES}",
            '.amdgcn_target "amdgcn-amd-amdhsa--gfx950"', ".text", f".globl {NAME}", ".p2align 8",
            f".type {NAME},@function", f"{NAME}:"]
        ftr = ['.section .rodata,"a"', ".p2align 6", f".amdhsa_kernel {NAME}",
               "  .amdhsa_next_free_vgpr 512", "  .amdhsa_next_free_sgpr 102", "  .amdhsa_accum_offset 256",
               "  .amdhsa_group_segment_fixed_size 0", "  .amdhsa_kernarg_size 96", "  .amdhsa_user_sgpr_count 2",
               "  .amdhsa_user_sgpr_kernarg_segment_ptr 1", "  .amdhsa_system_sgpr_workgroup_id_x 1", ".end_amdhsa_kernel"]
        if self.stamps:
            hdr.insert(1, "; stamps: " + " ".join(self.stamp_names))
        return "\n".join(hdr + lines + ftr) + "\n"


if __name__ == "__main__":
    out = sys.argv[1]
    kw = eval("dict(" + (sys.argv[2] if len(sys.argv) > 2 else "") + ")")
    open(out, "w").write(Gen(**kw).text())
```

```python
import sys, os
sys.path.insert(0, os.path.dirname(os.path.abspath(__file__)))
import asmlib

NAME = "sequential_preLN__gqa_block_cached__glu_gated_reglu__decode_kernel"

WS_RC = 0x800
WS_RL = 0x7000
WS_KY = 0x6800
WS_QB = 0x1000
WS_FL = 0x6000
WS_ST = 0x8000
WS_O1 = 0x10000
WS_A2 = 0x100000
WS_A3 = 0x110000
WS_STAMP = 0x200000
WS_SIZE = 0x300000
L_QP = 0
L_CNT = 256
L_STW = 512
L_OP = 1024
L_S2 = 10240
L_LNS = 13952
L_H = 11264
L_HN = 12288
L_GU = 13312
L_F = 13824
LDS_BYTES = 16384
sG, sJ, sE, sTAG = 28, 29, 30, 31
sK, sV, sWS, sX, sWQ, sWO, sWG, sWU, sWD, sOUT = 32, 36, 40, 44, 48, 52, 56, 60, 64, 68
sBASE, sT, sLO, sHI = 72, 73, 74, 75
sT16, sT2, sSPIN, sT1, sP = 76, 77, 78, 79, 80
sU0, sU1, sU2 = 81, 82, 83
sWQO, sRL = 24, 25
sXC, sLOC = 15, 27
sS2, sKL, sCB = 11, 12, 13
sT0 = 14
sM = 84
sMISS = 86
vL, vT0, vV, vK = 0, 1, 2, 3
vX3, vM, vLs, vST = 4, 5, 6, 7
vQ = 8
vA, vB, vC, vD = 12, 13, 14, 15
vZ = 16
vACC = 48
vAT = 80
vRD = 96
vBS = 112
vE = 120
vRING = 128
LOG2E = 0x3fb8aa3b
SPIN_LIMIT = 200000


def srd(i):
    return f"s[{i}:{i+3}]"


def vr(i, n=1, k="v"):
    return f"{k}{i}" if n == 1 else f"{k}[{i}:{i+n-1}]"


class Gen:
    def __init__(self, W=16, holdq=72, pq=56, holds=72, ps=56, slope=3, stamps=False, R=96, gmap=0, qat=24, W0=16, W2=None, Wat=256,
                 pace=0, pace0=0, pace_from=3, pace_to=31, wat=216, dbg='', wl=0, wo_at=256, loc=0, fl_at=200, fl_chk=240, wqs=(0,0,0,0), ig=8, dyn=0, rl_pub=232, nrole=28, amp=None, cln=0, osc='', cslp=0, ctl=None, wpos=None, rmap=0, prep_at=128, bars=(), dn2=0, hoist=0, split=0, wat2=0, sbar=0, dlate=0, clnp=0):
        self.sbar, self.dlate, self.clnp = sbar, dlate, clnp
        self.split, self.wat2 = split, wat2
        self.dn2, self.hoist = dn2, hoist
        self.bars = set(bars)
        self.wpos, self.rmap, self.prep_at = wpos, rmap, prep_at
        self.wa = 208 if wl == 4 else 128
        self.ctl = ctl
        self.cslp = cslp
        self.cln, self.osc = cln, osc
        self.amp = amp
        self.dyn, self.rl_pub, self.nrole = dyn, rl_pub, nrole
        self.ig = ig
        self.wqs = wqs
        self.wl, self.wo_at, self.loc, self.fl_at, self.fl_chk = wl, wo_at, loc, fl_at, fl_chk
        self.dbg = dbg
        self.W0, self.W2, self.Wat, self.wat = W0, (W2 or W), Wat, wat
        self.pace, self.pace0, self.pace_from, self.pace_to = pace, pace0, pace_from, pace_to
        self.gmap = gmap
        self.qat = qat
        self.W, self.holdq, self.pq, self.holds, self.ps, self.slope = W, holdq, pq, holds, ps, slope
        self.stamps = stamps
        self.R = R
        self.L = []
        self.id_w3 = {}
        self.role_known = not dyn
        self.nload = 0
        self.done = 0
        self.nlab = 0
        self.nstamp = 0
        self.stamp_names = []

    def A(self, s):
        self.L.append("  " + s if not s.endswith(":") else s)

    def lab(self, p="L"):
        self.nlab += 1
        return f"{p}_{self.nlab}"

    def load(self, text):
        self.A(text)
        self.nload += 1
        return self.nload

    def wait(self, lid):
        if lid <= self.done:
            return
        n = self.nload - lid
        self.A(f"s_waitcnt vmcnt({min(n, 63)})")
        self.done = lid if n <= 63 else self.nload - 63

    def waitall(self):
        self.A("s_waitcnt vmcnt(0)")
        self.done = self.nload

    def stamp(self, name):
        A = self.A
        if self.amp and name in ("start", self.amp[0]):
            A("s_memrealtime vcc")
            A("s_waitcnt lgkmcnt(0)")
            A(f"v_writelane_b32 v{vST}, vcc_lo, {0 if name == 'start' else 1}")
        if not self.stamps:
            return
        A("s_memrealtime vcc")
        A("s_waitcnt lgkmcnt(0)")
        A(f"v_writelane_b32 v{vST}, vcc_lo, {self.nstamp}")
        self.stamp_names.append(name)
        self.nstamp += 1

    def dpp(self, op, d, s0, s1, ctrl, bank=0xf, row=0xf):
        self.A(f"{op}_dpp v{d}, v{s0}, v{s1} {ctrl} row_mask:{row:#x} bank_mask:{bank:#x}")

    def wave_sum_to_sgpr(self, regs, sdst):
        for c in ("row_ror:8", "row_ror:4", "row_ror:2", "row_ror:1"):
            for r in regs:
                self.dpp("v_add_f32", r, r, r, c)
        for r in regs:
            self.dpp("v_add_f32", r, r, r, "row_bcast:15", row=0xa)
        for r in regs:
            self.dpp("v_add_f32", r, r, r, "row_bcast:31", row=0xc)
        for r, s in zip(regs, sdst):
            self.A(f"v_readlane_b32 s{s}, v{r}, 63")

    def allreduce_25(self, op, x, t):
        self.dpp(op, x, x, x, "row_ror:4")
        self.dpp(op, x, x, x, "row_ror:8")
        for sw in ("v_permlane16_swap_b32", "v_permlane32_swap_b32"):
            self.A(f"v_mov_b32 v{t}, v{x}")
            self.A(f"{sw} v{x}, v{t}")
            self.A(f"{op} v{x}, v{x}, v{t}")

    def tswap(self, which, pairs):
        sw = "v_permlane32_swap_b32" if which == 32 else "v_permlane16_swap_b32"
        for x, y in pairs:
            self.A(f"{sw} v{x}, v{y}")
        for x, y in pairs:
            self.A(f"v_add_f32 v{x}, v{x}, v{y}")

    def rnd(self, d, s):
        self.A(f"v_cvt_pk_bf16_f32 v{d}, 0, v{s}")

    def ln_scalars(self, vmean, vvar, vmb, vrs):
        A = self.A
        self.rnd(vmb, vmean)
        self.rnd(vrs, vvar)
        A(f"v_add_f32 v{vrs}, 0x3727c5ac, v{vrs}")
        self.rnd(vrs, vrs)
        A(f"v_sqrt_f32 v{vrs}, v{vrs}")
        self.rnd(vrs, vrs)
        A(f"v_rcp_f32 v{vrs}, v{vrs}")

    def norm_pair(self, d, lo, hi, vmb, vrs):
        A = self.A
        A(f"v_sub_f32 v{lo}, v{lo}, v{vmb}")
        A(f"v_sub_f32 v{hi}, v{hi}, v{vmb}")
        self.rnd(lo, lo)
        self.rnd(hi, hi)
        A(f"v_mul_f32 v{lo}, v{lo}, v{vrs}")
        A(f"v_mul_f32 v{hi}, v{hi}, v{vrs}")
        A(f"v_cvt_pk_bf16_f32 v{d}, v{lo}, v{hi}")

    def perm_pairs(self, dst, r0, r1):
        for u in range(4):
            self.A(f"v_perm_b32 v{dst+2*u}, v{r1+u}, v{r0+u}, s{sLO}")
            self.A(f"v_perm_b32 v{dst+2*u+1}, v{r1+u}, v{r0+u}, s{sHI}")

    def poll_issue(self, loads):
        ids = []
        for t in loads:
            ids.append(self.load(t))
        return ids

    def poll_finish(self, loads, check, counted_id=None):
        A = self.A
        n = len(loads)
        if counted_id is None:
            self.waitall()
        else:
            self.wait(counted_id)
        ldone, lretry = self.lab("Lpd"), self.lab("Lpr")

        def orall():
            if n == 1:
                A(f"s_mov_b64 s[{sM}:{sM+1}], s[{sMISS}:{sMISS+1}]")
            else:
                A(f"s_or_b64 s[{sM}:{sM+1}], s[{sMISS}:{sMISS+1}], s[{sMISS+2}:{sMISS+3}]")
                for k in range(2, n):
                    A(f"s_or_b64 s[{sM}:{sM+1}], s[{sM}:{sM+1}], s[{sMISS+2*k}:{sMISS+2*k+1}]")
            A(f"s_cmp_eq_u64 s[{sM}:{sM+1}], 0")
        for k in range(n):
            check(k)
        orall()
        A(f"s_cbranch_scc1 {ldone}")
        A(f"s_mov_b32 s{sSPIN}, {SPIN_LIMIT}")
        A(f"{lretry}:")
        for k in range(n):
            sk = self.lab("Lps")
            A(f"s_cmp_eq_u64 s[{sMISS+2*k}:{sMISS+2*k+1}], 0")
            A(f"s_cbranch_scc1 {sk}")
            A(f"s_mov_b64 exec, s[{sMISS+2*k}:{sMISS+2*k+1}]")
            for t in (loads[k] if isinstance(loads[k], (list, tuple)) else [loads[k]]):
                A(t)
            A(f"{sk}:")
        A("s_mov_b64 exec, -1")
        A("s_waitcnt vmcnt(0)")
        for k in range(n):
            sk = self.lab("Lpc")
            A(f"s_cmp_eq_u64 s[{sMISS+2*k}:{sMISS+2*k+1}], 0")
            A(f"s_cbranch_scc1 {sk}")
            check(k)
            A(f"{sk}:")
        orall()
        A(f"s_cbranch_scc1 {ldone}")
        A(f"s_sub_u32 s{sSPIN}, s{sSPIN}, 1")
        A(f"s_cmp_lg_u32 s{sSPIN}, 0")
        A(f"s_cbranch_scc1 {lretry}")
        A(f"{ldone}:")

    def check_sentinel(self, base):
        def chk(k):
            r = base + 4 * k
            t = vE + (k & 1)
            self.A(f"v_max3_u32 v{t}, v{r}, v{r+1}, v{r+2}")
            self.A(f"v_max_u32 v{t}, v{t}, v{r+3}")
            self.A(f"v_cmp_eq_u32 s[{sMISS+2*k}:{sMISS+2*k+1}], -1, v{t}")
        return chk

    def slot(self, i):
        s = i % self.R
        if s < 32:
            return ("a", s * 4)
        if s < 64:
            return ("v", vRING + (s - 32) * 4)
        return ("a", 128 + (s - 64) * 4)

    def issue_stream(self, i):
        t, r = self.slot(i)
        isK = i < 128
        a = i % 128
        off = (a >> 4) * (32 * 65536) + (a & 15) * 4096
        self.A(f"s_add_u32 s{sT}, s{sBASE}, {off}")
        return self.load(f"buffer_load_dwordx4 {vr(r,4,t)}, v{vK if isK else vV}, {srd(sK if isK else sV)}, s{sT} offen{'' if ('K' if isK else 'V') in self.dbg else ' nt'}")

    def k_dpp(self, a):
        d = vAT + (a & 3) * 4
        z = vZ + 8 * (a >> 5) + (a & 7)
        t = (a >> 3) & 3
        first = True
        for dp in (1, 2, 3):
            p = (t + dp) & 3
            ror = (4 * (t - p)) % 16
            self.dpp("v_add_f32", z, d + p, (d + t) if first else z, f"row_ror:{ror}", bank=1 << t)
            first = False
        if (a & 31) == 31:
            G = a >> 5
            zs = [vZ + 8 * G + i for i in range(8)]
            for z in zs:
                self.rnd(z, z)
            for z in zs:
                self.A(f"v_mul_f32 v{z}, 0x3db504f3, v{z}")
            for z in zs:
                self.rnd(z, z)
            if G == 0:
                self.A(f"v_max_f32 v{vM}, v{zs[0]}, v{zs[1]}")
                rest = zs[2:]
            else:
                rest = zs
            for i in range(0, len(rest), 2):
                self.A(f"v_max3_f32 v{vM}, v{vM}, v{rest[i]}, v{rest[i+1]}")

    def consume_k(self, a):
        t, r = self.slot(a)
        d = vAT + (a & 3) * 4
        self.A(f"v_mfma_f32_16x16x32_bf16 {vr(d,4)}, {vr(r,4,t)}, {vr(vQ,4)}, 0")
        if a >= 3:
            self.k_dpp(a - 3)
        if a == 127:
            for b in (125, 126, 127):
                self.k_dpp(b)

    def consume_v_group(self, gam):
        A = self.A
        G, t0 = gam >> 2, gam & 3
        pb = vZ + 8 * G
        if t0 == 0:
            B = pb
        else:
            B = vBS + (gam & 1) * 4
            for u in range(4):
                A(f"v_mov_b32_dpp v{B+u}, v{pb+u} row_ror:{16-4*t0} row_mask:0xf bank_mask:0xf")
        slots = [self.slot(128 + gam * 8 + tau) for tau in range(8)]
        for uu in range(4):
            src = []
            for tau in range(8):
                t, r = slots[tau]
                if t == "a":
                    tmp = vRD + (uu & 1) * 8 + tau
                    A(f"v_accvgpr_read_b32 v{tmp}, a{r+uu}")
                    src.append(tmp)
                else:
                    src.append(r + uu)
            alo = vAT + (uu & 1) * 8
            ahi = alo + 4
            for u in range(4):
                A(f"v_perm_b32 v{alo+u}, v{src[2*u+1]}, v{src[2*u]}, s{sLO}")
            for u in range(4):
                A(f"v_perm_b32 v{ahi+u}, v{src[2*u+1]}, v{src[2*u]}, s{sHI}")
            for e, a_ in ((2 * uu, alo), (2 * uu + 1, ahi)):
                acc = vr(vACC + 4 * e, 4)
                A(f"v_mfma_f32_16x16x32_bf16 {acc}, {vr(a_,4)}, {vr(B,4)}, {'0' if gam == 0 else acc}")

    def prologue(self):
        A = self.A
        A("s_cmp_ge_u32 s2, 256")
        A("s_cbranch_scc1 L_end")
        A("s_load_dwordx16 s[4:19], s[0:1], 0")
        A("s_load_dwordx8 s[20:27], s[0:1], 64")
        if self.pace or self.ctl:
            A("s_memrealtime vcc")
        A(f"v_lshrrev_b32 v{vT0}, 6, v0")
        A(f"v_and_b32 v{vL}, 63, v0")
        A(f"v_readfirstlane_b32 s3, v{vT0}")
        if self.gmap == 0:
            A(f"s_and_b32 s{sG}, s2, 7")
            A(f"s_lshr_b32 s{sJ}, s2, 3")
        elif self.gmap >= 2:
            A(f"s_add_u32 s{sG}, s2, {self.gmap - 1}")
            A(f"s_and_b32 s{sG}, s{sG}, 7")
            A(f"s_lshr_b32 s{sJ}, s2, 3")
        else:
            A(f"s_lshr_b32 s{sG}, s2, 5")
            A(f"s_and_b32 s{sJ}, s2, 31")
        A(f"v_lshlrev_b32 v{vV}, 4, v{vL}")
        A(f"v_bfe_u32 v{vK}, v{vL}, 2, 2")
        A(f"v_lshlrev_b32 v{vK}, 8, v{vK}")
        A(f"v_lshrrev_b32 v{vT0}, 4, v{vL}")
        A(f"v_lshl_add_u32 v{vK}, v{vT0}, 6, v{vK}")
        A(f"v_and_b32 v{vT0}, 3, v{vL}")
        A(f"v_lshl_add_u32 v{vK}, v{vT0}, 4, v{vK}")
        A(f"v_lshrrev_b32 v{vB}, 1, v{vL}")
        A(f"v_lshlrev_b32 v{vA}, {13 if 's' in self.dbg else 15 if 't' in self.dbg else 14}, v{vB}")
        A(f"v_and_b32 v{vT0}, 1, v{vL}")
        A(f"v_lshl_add_u32 v{vA}, v{vT0}, 4, v{vA}")
        A(f"v_lshlrev_b32 v{vB}, 2, v{vB}")
        A(f"v_and_b32 v{vC}, 31, v{vL}")
        A(f"v_lshlrev_b32 v{vC}, 3, v{vC}")
        A(f"v_lshrrev_b32 v{vT0}, 5, v{vL}")
        A(f"v_lshl_add_u32 v{vC}, v{vT0}, 2, v{vC}")
        for i in range(4):
            A(f"v_mov_b32 v{vQ+i}, -1")
        if self.stamps:
            A(f"v_mov_b32 v{vST}, 0")
        A(f"s_mov_b32 s{sLO}, 0x05040100")
        A(f"s_mov_b32 s{sHI}, 0x07060302")
        A(f"s_lshl_b32 s{sBASE}, s{sJ}, 16")
        A(f"s_lshl_b32 s{sT}, s3, 10")
        A(f"s_add_u32 s{sBASE}, s{sBASE}, s{sT}")
        A(f"s_lshl_b32 s{sT1}, s{sG}, 24")
        A(f"s_lshl_b32 s{sU0}, s{sG}, 10")
        A(f"s_lshl_b32 s{sU1}, s{sJ}, 5")
        A(f"s_add_u32 s{sU0}, s{sU0}, s{sU1}")
        A(f"s_lshl_b32 s{sU1}, s3, 20")
        A(f"s_add_u32 s{sU0}, s{sU0}, s{sU1}")
        A(f"s_lshl_b32 s{sU1}, s3, 8")
        A("s_waitcnt lgkmcnt(0)")
        A(f"s_load_dword s{sE}, s[26:27], 0")
        if self.pace or self.ctl:
            A(f"s_mov_b32 s{sT0}, vcc_lo")

        def mk(s, p, n):
            A(f"s_mov_b32 s{s}, s{p}")
            A(f"s_mov_b32 s{s+1}, s{p+1}")
            A(f"s_mov_b32 s{s+2}, {n}")
            A(f"s_mov_b32 s{s+3}, 0x20000")
        mk(sX, 4, 0 if 'x' in self.dbg else 1024)
        if 'r' in self.dbg:
            A(f"s_add_u32 s{sU0}, s{sU0}, 128")
        mk(sWQ, 10, 0 if 'q' in self.dbg else 512 * 8192)
        zx = vZ
        self.id_x = self.load(f"buffer_load_dwordx4 {vr(zx,4)}, v{vV}, {srd(sX)}, 0 offen")
        self.load(f"buffer_load_dword v{zx+4}, v{vB}, {srd(sX)}, s{sU1} offen")
        self.id_xp = self.load(f"buffer_load_dword v{zx+5}, v{vB}, {srd(sX)}, s{sU1} offen offset:128")
        A(f"s_mov_b32 s{sWQO}, s{sU0}")
        for i in range(4):
            if self.wqs[i] == 0:
                self.issue_wq(i)
        A(f"s_add_u32 s{sK}, s6, s{sT1}")
        A(f"s_addc_u32 s{sK+1}, s7, 0")
        A(f"s_mov_b32 s{sK+2}, {16<<20}")
        A(f"s_mov_b32 s{sK+3}, 0x20000")
        A(f"s_add_u32 s{sV}, s8, s{sT1}")
        A(f"s_addc_u32 s{sV+1}, s9, 0")
        A(f"s_mov_b32 s{sV+2}, {16<<20}")
        A(f"s_mov_b32 s{sV+3}, 0x20000")
        mk(sWS, 26, WS_SIZE)
        self.mk = mk

    def issue_wq(self, i):
        off = (i & 1) * 8192 + (i >> 1) * 64 * 8192
        if 's' in self.dbg:
            off = i * 32 * 8192
        if 't' in self.dbg:
            off = i * 8192
        self.A(f"s_add_u32 s{sT}, s{sWQO}, {off}")
        self.id_wq = self.load(f"buffer_load_dwordx4 {vr(vZ+8+4*i,4)}, v{vA}, {srd(sWQ)}, s{sT} offen{' nt' if 'N' in self.dbg else ''}")

    def prologue2(self):
        A = self.A
        mk = self.mk
        self.load(f"buffer_load_dword v{vX3}, v{vC}, {srd(sX)}, s{sU1} offen")
        A(f"s_lshl_b32 s{sU0}, s{sG}, 16")
        A(f"s_lshl_b32 s{sU1}, s{sJ}, 11")
        A(f"s_add_u32 s{sU0}, s{sU0}, s{sU1}")
        A(f"s_add_u32 s{sU0}, s{sU0}, {WS_O1}")
        A(f"s_lshl_b32 s{sU1}, s2, 11")
        A(f"s_add_u32 s{sU1}, s{sU1}, {WS_A3 - 2048}")
        A("s_cmp_lt_u32 s3, 2")
        A(f"s_cselect_b32 s{sU0}, s{sU0}, s{sU1}")
        A(f"s_lshl_b32 s{sU1}, s3, 10")
        A(f"s_add_u32 s{sU0}, s{sU0}, s{sU1}")
        if 'z' not in self.dbg:
            A(f"buffer_store_dwordx4 {vr(vQ,4)}, v{vV}, {srd(sWS)}, s{sU0} offen sc1")
        A(f"s_lshl_b32 s{sP}, s{sG}, 12")
        A(f"s_lshr_b32 s{sU1}, s{sJ}, 4")
        A(f"s_lshl_b32 s{sU1}, s{sU1}, 11")
        A(f"s_add_u32 s{sP}, s{sP}, s{sU1}")
        A(f"s_and_b32 s{sU1}, s{sJ}, 15")
        A(f"s_lshl_b32 s{sU1}, s{sU1}, 7")
        A(f"s_add_u32 s{sP}, s{sP}, s{sU1}")
        A(f"s_add_u32 s{sP}, s{sP}, {WS_A2}")
        A("s_mov_b64 exec, 0xff")
        if 'z' not in self.dbg:
            A(f"buffer_store_dwordx4 {vr(vQ,4)}, v{vV}, {srd(sWS)}, s{sP} offen sc1")
        A("s_mov_b64 exec, -1")
        mk(sWO, 12, 0 if 'o' in self.dbg else 4096 * 1024)
        mk(sWG, 16, 0)
        mk(sWU, 18, 0)
        mk(sWD, 20, 0)
        if self.split:
            A(f"s_bfe_u32 s{sS2}, s{sJ}, 0x10002")
            A(f"s_cmp_lg_u32 s{sS2}, 0")
            A(f"s_cselect_b32 s{sWO+2}, s{sWO+2}, 0")
            A(f"s_and_b32 s4, s{sJ}, 3")
            A(f"s_or_b32 s{sKL}, s4, s{sS2}")
            A(f"s_lshl_b32 s{sRL}, s{sG}, 2")
            A(f"s_lshr_b32 s{sU1}, s{sJ}, 3")
            A(f"s_add_u32 s{sRL}, s{sRL}, s{sU1}")
            A(f"s_bfe_u32 s{sU0}, s{sJ}, 0x10003")
            A(f"s_lshl_b32 s{sU0}, s{sU0}, 2")
            A(f"s_add_u32 s{sCB}, s{sU0}, s4")
            A(f"s_lshl_b32 s{sP}, s{sG}, 12")
            A(f"s_lshr_b32 s{sU1}, s{sJ}, 4")
            A(f"s_lshl_b32 s{sU1}, s{sU1}, 11")
            A(f"s_add_u32 s{sP}, s{sP}, s{sU1}")
            A(f"s_lshl_b32 s{sU1}, s{sCB}, 8")
            A(f"s_add_u32 s{sP}, s{sP}, s{sU1}")
            A(f"s_add_u32 s{sP}, s{sP}, {WS_A2}")
        elif self.dyn == 2:
            A("s_bfe_u32 s4, s2, 0x20003")
            A(f"s_and_b32 s{sRL}, s2, 7")
            A(f"s_lshl_b32 s{sRL}, s{sRL}, 3")
            A(f"s_lshr_b32 s{sU1}, s2, 5")
            A(f"s_add_u32 s{sRL}, s{sRL}, s{sU1}")
        elif self.dyn:
            A("s_bfe_u32 s4, s2, 0x20003")
            A("s_or_b32 s5, s4, s3")
            A(f"s_and_b32 s{sRL}, s2, 7")
            A(f"s_lshl_b32 s{sRL}, s{sRL}, 7")
            A(f"s_lshr_b32 s{sU1}, s2, 5")
            A(f"s_lshl_b32 s{sU1}, s{sU1}, 2")
            A(f"s_add_u32 s{sRL}, s{sRL}, s{sU1}")
            A(f"s_add_u32 s{sRL}, s{sRL}, {WS_RL}")
            skip = self.lab("Lz")
            A(f"s_or_b32 s{sU1}, s2, s3")
            A(f"s_cmp_lg_u32 s{sU1}, 0")
            A(f"s_cbranch_scc1 {skip}")
            A("s_mov_b64 exec, 1")
            A(f"buffer_store_dword v{vV}, v{vV}, {srd(sWS)}, 0 offen offset:{WS_RC} sc1")
            A("s_mov_b64 exec, -1")
            A(f"{skip}:")
        else:
            A("s_lshr_b32 s5, s2, 5")
            if self.rmap == 1:
                A("s_sub_u32 s4, 7, s5")
                A("s_sub_u32 s9, s5, 3")
                A("s_cmp_lt_u32 s9, 2")
                A("s_cselect_b32 s5, s4, s5")
            A("s_lshl_b32 s5, s5, 3")
            A("s_and_b32 s4, s2, 7")
            A("s_add_u32 s4, s4, s5")
            A("s_lshl_b32 s4, s4, 2")
            A("s_bfe_u32 s5, s2, 0x20003")
            A("s_add_u32 s4, s4, s5")
            self.role_set()
        mk(sOUT, 22, 1024)

    def role_set(self):
        A = self.A
        A("s_cmp_lt_u32 s4, 112")
        A("s_cselect_b32 s5, 1, 0")
        if 'g' not in self.dbg:
            A(f"s_cselect_b32 s{sWG+2}, {512*3584}, 0")
            A(f"s_cselect_b32 s{sWU+2}, {512*3584}, 0")
        if 'd' not in self.dbg:
            A(f"s_cselect_b32 s{sWD+2}, {1792*1024}, 0")

    def role_ticket(self):
        A = self.A
        skip = self.lab("Lt")
        A("s_cmp_lg_u32 s5, 0")
        A(f"s_cbranch_scc1 {skip}")
        A(f"v_mov_b32 v{vE+4}, 1")
        A("s_mov_b64 exec, 1")
        A(f"buffer_atomic_add v{vE+4}, v{vV}, {srd(sWS)}, 0 offen offset:{WS_RC} sc0")
        A("s_mov_b64 exec, -1")
        A(f"{skip}:")
        self.id_tk = self.nload + 1

    def role_publish(self):
        A = self.A
        assert self.id_tk <= self.nload
        self.wait(self.id_tk)
        skip = self.lab("Lt")
        A("s_cmp_lg_u32 s5, 0")
        A(f"s_cbranch_scc1 {skip}")
        A(f"v_min_u32 v{vE+4}, 255, v{vE+4}")
        A(f"v_lshlrev_b32 v{vE+4}, 16, v{vE+4}")
        A(f"v_or_b32 v{vE+4}, s{sT16}, v{vE+4}")
        A("s_mov_b64 exec, 1")
        A(f"buffer_store_dword v{vE+4}, v{vV}, {srd(sWS)}, s{sRL} offen sc1")
        A("s_mov_b64 exec, -1")
        A(f"{skip}:")

    def role_poll_issue(self):
        self.rl = [f"buffer_load_dword v{vE+5}, off, {srd(sWS)}, s{sRL} sc1"]
        self.id_rl = self.load(self.rl[0])

    def role_poll_finish(self):
        A = self.A

        def chk(k):
            A(f"v_and_b32 v{vE+6}, 0xffff, v{vE+5}")
            A(f"v_cmp_ne_u32 s[{sMISS}:{sMISS+1}], s{sT16}, v{vE+6}")
        self.poll_finish(self.rl, chk, self.id_rl)
        A(f"v_readfirstlane_b32 s5, v{vE+5}")
        A("s_lshr_b32 s5, s5, 16")
        A("s_lshl_b32 s5, s5, 2")
        A("s_add_u32 s4, s4, s5")
        self.role_set()
        self.role_addr()

    def qphase(self):
        A = self.A
        zx = vZ
        t = vACC
        self.wait(self.id_xp)
        for u in range(4):
            A(f"v_lshlrev_b32 v{t+2*u}, 16, v{zx+u}")
            A(f"v_and_b32 v{t+2*u+1}, 0xffff0000, v{zx+u}")
        s = t + 8
        A(f"v_add_f32 v{s}, v{t}, v{t+1}")
        for i in range(2, 8):
            A(f"v_add_f32 v{s}, v{s}, v{t+i}")
        self.wave_sum_to_sgpr([s], [sU0])
        mean, var, mb, rs = t + 9, t + 10, t + 11, t + 12
        A(f"v_mov_b32 v{mean}, 0x3b000000")
        A(f"v_mul_f32 v{mean}, s{sU0}, v{mean}")
        for i in range(8):
            A(f"v_sub_f32 v{t+i}, v{t+i}, v{mean}")
        A(f"v_mul_f32 v{s}, v{t}, v{t}")
        for i in range(1, 8):
            A(f"v_fmac_f32 v{s}, v{t+i}, v{t+i}")
        self.wave_sum_to_sgpr([s], [sU0])
        A(f"v_mov_b32 v{var}, 0x3b000000")
        A(f"v_mul_f32 v{var}, s{sU0}, v{var}")
        self.ln_scalars(mean, var, mb, rs)
        xn = t + 14
        for i in range(2):
            A(f"v_lshlrev_b32 v{t+2*i}, 16, v{zx+4+i}")
            A(f"v_and_b32 v{t+2*i+1}, 0xffff0000, v{zx+4+i}")
            self.norm_pair(xn + i, t + 2 * i, t + 2 * i + 1, mb, rs)
        self.wait(self.id_wq)
        w = zx + 8
        p0, p1 = vAT, vAT + 8
        self.perm_pairs(p0, w, w + 4)
        self.perm_pairs(p1, w + 8, w + 12)
        acc = t + 16
        for c in range(8):
            A(f"v_dot2_f32_bf16 v{acc+c}, v{p0+c}, v{xn}, 0")
        for c in range(8):
            A(f"v_dot2_f32_bf16 v{acc+c}, v{p1+c}, v{xn+1}, v{acc+c}")
        self.tswap(32, [(acc + c, acc + c + 4) for c in range(4)])
        self.tswap(16, [(acc + c, acc + c + 2) for c in range(2)])
        for c in ("row_ror:4", "row_ror:8", "quad_perm:[2,3,0,1]"):
            for r in (acc, acc + 1):
                self.dpp("v_add_f32", r, r, r, c)
        ad = t
        A(f"v_and_b32 v{ad}, 1, v{vL}")
        A(f"v_lshlrev_b32 v{ad}, 5, v{ad}")
        A(f"v_lshrrev_b32 v{t+1}, 4, v{vL}")
        A(f"v_lshl_add_u32 v{ad}, v{t+1}, 3, v{ad}")
        A(f"s_lshl_b32 s{sU0}, s3, 6")
        A(f"v_add_u32 v{ad}, s{sU0}, v{ad}")
        A(f"v_mov_b32 v{t+2}, 0")
        A(f"s_mov_b32 exec_lo, 0x00030003")
        A(f"s_mov_b32 exec_hi, 0x00030003")
        A(f"ds_write_b64 v{ad}, {vr(acc,2)} offset:{L_QP}")
        A(f"ds_write_b32 v{t+2}, v{t+2} offset:{L_CNT}")
        A("s_mov_b64 exec, -1")
        A("s_waitcnt lgkmcnt(0)")
        A(f"s_add_u32 s{sE}, s{sE}, 1")
        A(f"s_and_b32 s{sTAG}, s{sE}, 0xff")
        A(f"s_mul_i32 s{sTAG}, s{sTAG}, 0x01010101")
        A(f"s_xor_b32 s{sTAG}, s{sTAG}, 0x33aa5500")
        A(f"s_and_b32 s{sT16}, s{sTAG}, 0xffff")
        A(f"s_mul_i32 s{sT2}, s{sT16}, 0x10001")
        A(f"s_getreg_b32 s{sXC}, hwreg(HW_REG_XCC_ID)")
        A(f"s_lshl_b32 s{sXC}, s{sXC}, 16")
        A(f"s_or_b32 s{sXC}, s{sXC}, s{sT16}")
        A("s_barrier")
        skip = self.lab("Lq")
        A("s_cmp_lg_u32 s3, 0")
        A(f"s_cbranch_scc1 {skip}")
        A("s_mov_b64 exec, 0xf")
        for wv in range(4):
            A(f"ds_read_b128 {vr(t+4*wv,4)}, v{vV} offset:{L_QP+64*wv}")
        A(f"s_lshl_b32 s{sU0}, s{sG}, 11")
        A(f"s_lshl_b32 s{sU1}, s{sJ}, 6")
        A(f"s_add_u32 s{sU0}, s{sU0}, s{sU1}")
        A(f"s_add_u32 s{sU0}, s{sU0}, {WS_QB}")
        A("s_waitcnt lgkmcnt(0)")
        for i in range(4):
            A(f"v_add_f32 v{t+i}, v{t+i}, v{t+4+i}")
            A(f"v_add_f32 v{t+8+i}, v{t+8+i}, v{t+12+i}")
        for i in range(4):
            A(f"v_add_f32 v{t+i}, v{t+i}, v{t+8+i}")
        for i in range(4):
            self.rnd(t + i, t + i)
        for i in range(4):
            A(f"v_or_b32 v{t+i}, s{sT16}, v{t+i}")
        A(f"buffer_store_dwordx4 {vr(t,4)}, v{vV}, {srd(sWS)}, s{sU0} offen sc1")
        A("s_mov_b64 exec, -1")
        A(f"{skip}:")
        self.stamp("qpub")

    def qpoll_issue(self):
        A = self.A
        ad = vE + 2
        A(f"v_and_b32 v{ad}, 3, v{vL}")
        A(f"v_lshlrev_b32 v{ad}, 9, v{ad}")
        A(f"v_lshrrev_b32 v{vT0}, 2, v{vL}")
        A(f"v_lshl_add_u32 v{ad}, v{vT0}, 5, v{ad}")
        A(f"s_lshl_b32 s{sU2}, s{sG}, 11")
        A(f"s_add_u32 s{sU2}, s{sU2}, {WS_QB}")
        b = vACC
        self.q_loads = [[f"buffer_load_dwordx4 {vr(b,4)}, v{ad}, {srd(sWS)}, s{sU2} offen sc1",
                         f"buffer_load_dwordx4 {vr(b+4,4)}, v{ad}, {srd(sWS)}, s{sU2} offen offset:16 sc1"]]
        self.load(self.q_loads[0][0])
        self.id_q = self.load(self.q_loads[0][1])

    def qpoll_finish(self):
        A = self.A
        b = vACC
        t = vACC + 8

        def chk(k):
            for u in range(4):
                A(f"v_perm_b32 v{t+u}, v{b+2*u+1}, v{b+2*u}, s{sLO}")
            for u in range(4):
                A(f"v_xor_b32 v{t+u}, s{sT2}, v{t+u}")
            A(f"v_or3_b32 v{t}, v{t}, v{t+1}, v{t+2}")
            A(f"v_or_b32 v{t}, v{t}, v{t+3}")
            A(f"v_cmp_ne_u32 s[{sMISS}:{sMISS+1}], 0, v{t}")
        self.stamp("qchk")
        self.poll_finish(self.q_loads, chk, self.id_q)
        for u in range(4):
            A(f"v_perm_b32 v{vQ+u}, v{b+2*u+1}, v{b+2*u}, s{sHI}")
        self.stamp("qok")

    def expd(self, d, a, b):
        self.A(f"v_sub_f32 v{d}, v{a}, v{b}")
        self.A(f"v_mul_f32 v{d}, {LOG2E:#x}, v{d}")
        self.A(f"v_exp_f32 v{d}, v{d}")

    def stats_publish(self):
        A = self.A
        self.stamp("kdone")
        for z in range(32):
            A(f"v_sub_f32 v{vZ+z}, v{vZ+z}, v{vM}")
        for z in range(32):
            A(f"v_mul_f32 v{vZ+z}, {LOG2E:#x}, v{vZ+z}")
        for z in range(32):
            A(f"v_exp_f32 v{vZ+z}, v{vZ+z}")
        t = vAT
        for i in range(4):
            A(f"v_add_f32 v{t+i}, v{vZ+i}, v{vZ+4+i}")
        for z in range(8, 32):
            A(f"v_add_f32 v{t+(z&3)}, v{t+(z&3)}, v{vZ+z}")
        A(f"v_add_f32 v{t}, v{t}, v{t+1}")
        A(f"v_add_f32 v{t+2}, v{t+2}, v{t+3}")
        A(f"v_add_f32 v{vLs}, v{t}, v{t+2}")
        mw, lw, tt = t + 4, t + 5, t + 6
        A(f"v_mov_b32 v{mw}, v{vM}")
        self.allreduce_25("v_max_f32", mw, tt)
        self.expd(lw, vM, mw)
        A(f"v_mul_f32 v{lw}, v{lw}, v{vLs}")
        self.allreduce_25("v_add_f32", lw, tt)
        ad = t + 7
        A(f"v_lshlrev_b32 v{ad}, 3, v{vL}")
        A(f"s_lshl_b32 s{sU0}, s3, 5")
        A(f"v_add_u32 v{tt}, s{sU0}, v{ad}")
        A(f"v_mov_b32 v{t+8}, 0")
        A(f"v_mov_b32 v{t+9}, 1")
        A("s_mov_b64 exec, 0xf")
        A(f"ds_write_b64 v{tt}, {vr(mw,2)} offset:{L_STW}")
        A("s_mov_b64 exec, 1")
        A(f"ds_add_rtn_u32 v{t+10}, v{t+8}, v{t+9} offset:{L_CNT}")
        A("s_mov_b64 exec, -1")
        A(f"v_and_b32 v{ad}, 0x78, v{ad}")
        A("s_waitcnt lgkmcnt(0)")
        A(f"v_readfirstlane_b32 s{sU0}, v{t+10}")
        skip = self.lab("Ls")
        A(f"s_cmp_lg_u32 s{sU0}, 3")
        A(f"s_cbranch_scc1 {skip}")
        m, l = t + 8, t + 9
        A(f"ds_read_b64 {vr(m,2)}, v{ad} offset:{L_STW}")
        if self.dyn == 2:
            A("s_memrealtime vcc")
        A(f"s_lshl_b32 s{sU0}, s{sG}, 11")
        A(f"s_lshl_b32 s{sU1}, s{sJ}, 6")
        A(f"s_add_u32 s{sU0}, s{sU0}, s{sU1}")
        A(f"s_add_u32 s{sU0}, s{sU0}, {WS_ST}")
        A(f"s_lshl_b32 s{sU1}, s2, 2")
        A(f"s_add_u32 s{sU1}, s{sU1}, {WS_FL}")
        A("s_waitcnt lgkmcnt(0)")
        o = t + 12
        A(f"v_mov_b32 v{o}, v{m}")
        self.dpp("v_max_f32", o, o, o, "row_ror:4")
        self.dpp("v_max_f32", o, o, o, "row_ror:8")
        self.expd(tt, m, o)
        A(f"v_mul_f32 v{l}, v{l}, v{tt}")
        self.dpp("v_add_f32", l, l, l, "row_ror:4")
        self.dpp("v_add_f32", l, l, l, "row_ror:8")
        A(f"v_or_b32 v{o}, s{sT16}, v{o}")
        A(f"v_and_b32 v{o+1}, 0xffff0000, v{l}")
        A(f"v_or_b32 v{o+1}, s{sT16}, v{o+1}")
        A(f"v_lshlrev_b32 v{o+2}, 16, v{l}")
        A(f"v_or_b32 v{o+2}, s{sT16}, v{o+2}")
        A(f"v_mov_b32 v{o+3}, s{sXC}")
        A(f"v_mov_b32 v{tt}, s{sTAG}")
        A("s_mov_b64 exec, 0xf")
        A(f"buffer_store_dwordx4 {vr(o,4)}, v{vV}, {srd(sWS)}, s{sU0} offen sc1")
        A("s_mov_b64 exec, 1")
        A(f"buffer_store_dword v{tt}, v{vV}, {srd(sWS)}, s{sU1} offen sc1")
        if self.dyn == 2:
            assert tt % 2 == 0
            A(f"v_mov_b32 v{tt+1}, vcc_lo")
            A(f"s_lshl_b32 s{sU1}, s{sRL}, 3")
            A(f"s_add_u32 s{sU1}, s{sU1}, {WS_KY}")
            A(f"s_cmp_lg_u32 s{sKL if self.split else 4}, 0")
            A(f"s_cbranch_scc1 {skip}x")
            A(f"buffer_store_dwordx2 {vr(tt,2)}, v{vV}, {srd(sWS)}, s{sU1} offen sc1")
            A(f"{skip}x:")
        A("s_mov_b64 exec, -1")
        A(f"{skip}:")
        self.stamp("spub")

    def spoll_issue(self):
        A = self.A
        A(f"s_lshl_b32 s{sU2}, s{sG}, 11")
        A(f"s_add_u32 s{sU2}, s{sU2}, {WS_ST}")
        b = vACC
        self.s_loads = [[f"buffer_load_dwordx4 {vr(b,4)}, v{vV}, {srd(sWS)}, s{sU2} offen sc1",
                         f"buffer_load_dwordx4 {vr(b+4,4)}, v{vV}, {srd(sWS)}, s{sU2} offen offset:1024 sc1"]]
        self.load(self.s_loads[0][0])
        self.id_s = self.load(self.s_loads[0][1])

    def spoll_finish(self):
        A = self.A
        b = vACC
        t = vACC + 8

        def chk(k):
            A(f"v_perm_b32 v{t}, v{b+1}, v{b}, s{sLO}")
            A(f"v_perm_b32 v{t+1}, v{b+5}, v{b+4}, s{sLO}")
            A(f"v_perm_b32 v{t+2}, v{b+6}, v{b+2}, s{sLO}")
            A(f"v_perm_b32 v{t+3}, v{b+7}, v{b+3}, s{sLO}")
            for u in range(4):
                A(f"v_xor_b32 v{t+u}, s{sT2}, v{t+u}")
            A(f"v_or3_b32 v{t}, v{t}, v{t+1}, v{t+2}")
            A(f"v_or_b32 v{t}, v{t}, v{t+3}")
            A(f"v_cmp_ne_u32 s[{sMISS}:{sMISS+1}], 0, v{t}")
        self.stamp("schk")
        self.poll_finish(self.s_loads, chk, self.id_s)
        A(f"v_xor_b32 v{t}, s{sXC}, v{b+3}")
        A(f"v_xor_b32 v{t+1}, s{sXC}, v{b+7}")
        A(f"v_or_b32 v{t}, v{t}, v{t+1}")
        A(f"v_cmp_ne_u32 vcc, 0, v{t}")
        A("s_cmp_eq_u64 vcc, 0")
        A(f"s_cselect_b32 s{sLOC}, 1, 0")
        if 'P' in self.dbg:
            self.delay(3000, f"s{sLOC}")
        ma, mb, la, lb, M, tt, f = t, t + 1, t + 2, t + 3, t + 4, t + 5, t + 6
        A(f"v_and_b32 v{ma}, 0xffff0000, v{b}")
        A(f"v_and_b32 v{mb}, 0xffff0000, v{b+4}")
        A(f"v_perm_b32 v{la}, v{b+1}, v{b+2}, s{sHI}")
        A(f"v_perm_b32 v{lb}, v{b+5}, v{b+6}, s{sHI}")
        A(f"v_max_f32 v{M}, v{ma}, v{mb}")
        self.allreduce_25("v_max_f32", M, tt)
        self.expd(ma, ma, M)
        self.expd(mb, mb, M)
        A(f"v_mul_f32 v{la}, v{la}, v{ma}")
        A(f"v_fmac_f32 v{la}, v{lb}, v{mb}")
        self.allreduce_25("v_add_f32", la, tt)
        A(f"v_rcp_f32 v{lb}, v{la}")
        self.expd(f, vM, M)
        A(f"v_fma_f32 v{tt}, -v{la}, v{lb}, 1.0")
        A(f"v_fmac_f32 v{lb}, v{tt}, v{lb}")
        if 'F' in self.dbg:
            A(f"v_mov_b32 v{vLs}, v{lb}")
        else:
            A(f"v_mul_f32 v{f}, v{f}, v{lb}")
        for z in range(32):
            A(f"v_mul_f32 v{vZ+z}, v{vZ+z}, v{f}")
        for G in range(4):
            for u in range(4):
                A(f"v_cvt_pk_bf16_f32 v{vZ+8*G+u}, v{vZ+8*G+2*u}, v{vZ+8*G+2*u+1}")
        self.stamp("sok")

    def weights_prep_addr(self):
        A = self.A
        A(f"v_bfe_u32 v{vA}, v{vL}, 3, 1")
        A(f"v_lshlrev_b32 v{vA}, 15, v{vA}")
        A(f"v_and_b32 v{vT0}, 7, v{vL}")
        A(f"v_lshl_add_u32 v{vA}, v{vT0}, 10, v{vA}")
        A(f"v_lshrrev_b32 v{vT0}, 4, v{vL}")
        A(f"v_lshl_add_u32 v{vA}, v{vT0}, 4, v{vA}")
        A(f"v_lshrrev_b32 v{vB}, 1, v{vL}")
        A(f"v_mul_u32_u24 v{vB}, {4*3584}, v{vB}")
        A(f"v_and_b32 v{vC}, 1, v{vL}")
        A(f"v_lshl_add_u32 v{vB}, v{vC}, 4, v{vB}")
        if self.dn2:
            A(f"v_lshlrev_b32 v{vC}, 6, v{vT0}")
            A(f"v_and_b32 v{vT0}, 3, v{vL}")
            A(f"v_lshl_add_u32 v{vC}, v{vT0}, 4, v{vC}")
            A(f"v_bfe_u32 v{vT0}, v{vL}, 2, 2")
            A(f"v_lshl_add_u32 v{vC}, v{vT0}, 12, v{vC}")
        else:
            A(f"v_lshlrev_b32 v{vC}, 12, v{vT0}")
            A(f"v_and_b32 v{vT0}, 15, v{vL}")
            A(f"v_lshl_add_u32 v{vC}, v{vT0}, 4, v{vC}")
        A(f"s_lshl_b32 s6, s{sG}, 19")
        A(f"s_lshr_b32 s7, s{sJ}, 4")
        A("s_lshl_b32 s7, s7, 18")
        A("s_add_u32 s6, s6, s7")
        A("s_lshl_b32 s7, s3, 16")
        A("s_add_u32 s6, s6, s7")
        if self.split:
            A(f"s_lshl_b32 s7, s{sCB}, 7")
        else:
            A(f"s_and_b32 s7, s{sJ}, 15")
            A("s_lshl_b32 s7, s7, 6")
        A("s_add_u32 s6, s6, s7")
        if not self.dyn:
            self.role_addr()

    def role_addr(self):
        A = self.A
        A(f"s_mul_i32 s7, s3, {128*3584}")
        A("s_lshl_b32 s8, s4, 5")
        A("s_add_u32 s7, s7, s8")
        if 'l' in self.dbg:
            A(f"v_mov_b32 v{vB}, v{vV}")
            A("s_lshl_b32 s7, s4, 14")
            A("s_lshl_b32 s8, s3, 12")
            A("s_add_u32 s7, s7, s8")
        if 'c' in self.dbg:
            A(f"v_lshrrev_b32 v{vB}, 3, v{vL}")
            A(f"v_mul_u32_u24 v{vB}, 3584, v{vB}")
            A(f"v_and_b32 v{vT0}, 7, v{vL}")
            A(f"v_lshl_add_u32 v{vB}, v{vT0}, 4, v{vB}")
            A("s_and_b32 s7, s4, 3")
            A("s_lshl_b32 s7, s7, 2")
            A("s_add_u32 s7, s7, s3")
            A(f"s_mul_i32 s7, s7, {32*3584}")
            A("s_lshr_b32 s8, s4, 2")
            A("s_lshl_b32 s8, s8, 7")
            A("s_add_u32 s7, s7, s8")
        A("s_lshl_b32 s8, s4, 14")
        A("s_lshl_b32 s9, s3, 8")
        A("s_add_u32 s8, s8, s9")

    def issue_weight(self, k):
        A = self.A
        grp, i = k >> 2, k & 3
        if grp == 0:
            A(f"s_add_u32 s{sT}, s6, {i*8192}")
            self.id_wo = self.load(f"buffer_load_dwordx4 {vr(vZ+8*i+4,4)}, v{vA}, {srd(sWO)}, s{sT} offen{'' if 'w' in self.dbg else ' nt'}")
            if self.split:
                assert self.wo_at >= 240 and self.R == 96
                self.id_wo = self.load(f"buffer_load_dwordx4 {vr(vRING+32+4*i,4)}, v{vA}, {srd(sWO)}, s{sT} offen offset:64{'' if 'w' in self.dbg else ' nt'}")
        else:
            dst = vr(vRING+32+(k-4)*4,4,'v') if self.wl in (1, 3) else vr(self.wa+(k-4)*4,4,'a')
            if grp in (1, 2):
                A(f"s_add_u32 s{sT}, s7, {i*(1024 if 'l' in self.dbg else 8*3584 if 'c' in self.dbg else 3584)}")
                self.id_w3[grp] = self.load(f"buffer_load_dwordx4 {dst}, v{vB}, {srd(sWG if grp == 1 else sWU)}, s{sT} offen{' nt' if 'n' in self.dbg else ''}")
            else:
                self.id_w3[grp] = self.load(f"buffer_load_dwordx4 {dst}, v{vC}, {srd(sWD)}, s8 offen offset:{i*1024} nt")

    def flags_issue(self):
        A = self.A
        A(f"s_mov_b32 s9, {WS_FL}")
        self.fl = [f"buffer_load_dwordx4 {vr(vE+4,4)}, v{vV}, {srd(sWS)}, s9 offen sc1"]
        self.id_fl = self.load(self.fl[0])
        if self.dyn == 2:
            A(f"v_lshlrev_b32 v{vD}, 3, v{vL}")
            if self.split:
                A(f"v_and_b32 v{vD}, 0xf8, v{vD}")
            self.fl.append(f"buffer_load_dwordx2 {vr(vE+2,2)}, v{vD}, {srd(sWS)}, s9 offen offset:{WS_KY-WS_FL} sc1")
            self.id_fl = self.load(self.fl[1])

    def flags_finish(self):
        A = self.A

        def chkf(k):
            if k == 1:
                A(f"v_cmp_ne_u32 s[{sMISS+2}:{sMISS+3}], s{sTAG}, v{vE+2}")
                return
            A(f"v_xor_b32 v{vE}, s{sTAG}, v{vE+4}")
            A(f"v_xor_b32 v{vE+1}, s{sTAG}, v{vE+5}")
            A(f"v_or_b32 v{vE}, v{vE}, v{vE+1}")
            A(f"v_xor_b32 v{vE+1}, s{sTAG}, v{vE+6}")
            A(f"v_or_b32 v{vE}, v{vE}, v{vE+1}")
            A(f"v_xor_b32 v{vE+1}, s{sTAG}, v{vE+7}")
            A(f"v_or_b32 v{vE}, v{vE}, v{vE+1}")
            A(f"v_cmp_ne_u32 s[{sMISS}:{sMISS+1}], 0, v{vE}")
        self.poll_finish(self.fl, chkf, self.id_fl)
        if self.dyn == 2:
            A(f"v_readfirstlane_b32 s{sU0}, v{vE+3}")
            A(f"s_sub_u32 s{sU0}, 0x2000000, s{sU0}")
            A(f"v_add_u32 v{vE+3}, s{sU0}, v{vE+3}")
            A(f"v_lshl_add_u32 v{vE+3}, v{vE+3}, 6, v{vL}")
            A(f"v_readlane_b32 s{sU0}, v{vE+3}, s{sRL}")
            A(f"v_cmp_gt_u32 vcc, s{sU0}, v{vE+3}")
            A(f"s_bcnt1_i32_b{'32 s5, vcc_lo' if self.split else '64 s5, vcc'}")
            A("s_lshl_b32 s5, s5, 2")
            A("s_add_u32 s4, s4, s5")
            if self.split:
                A(f"s_lshl_b32 s5, s{sS2}, 8")
                A("s_add_u32 s4, s4, s5")
            self.role_set()
            self.role_addr()
            self.role_known = True

    def tail(self):
        A = self.A
        self.stamp("vdone")
        t = vAT
        ad = vE + 2
        A(f"v_and_b32 v{ad}, 3, v{vL}")
        A(f"v_lshrrev_b32 v{vT0}, 4, v{vL}")
        A(f"v_lshl_add_u32 v{ad}, v{ad}, 2, v{vT0}")
        A(f"v_mul_u32_u24 v{ad}, 144, v{ad}")
        A(f"s_mul_i32 s{sU0}, s3, 2304")
        A(f"v_add_u32 v{ad}, s{sU0}, v{ad}")
        rd = vE + 3
        A(f"s_and_b32 s{sU1}, s3, 1")
        A(f"s_mul_i32 s{sU0}, s{sU1}, {8*144}")
        A(f"v_lshrrev_b32 v{rd}, 3, v{vL}")
        A(f"v_mul_u32_u24 v{rd}, 144, v{rd}")
        A(f"v_and_b32 v{vT0}, 7, v{vL}")
        A(f"v_lshl_add_u32 v{rd}, v{vT0}, 4, v{rd}")
        A(f"v_add_u32 v{rd}, s{sU0}, v{rd}")
        if 'F' in self.dbg:
            for e in range(32):
                A(f"v_mul_f32 v{vACC+e}, v{vACC+e}, v{vLs}")
        A("s_mov_b32 exec_lo, 0x000f000f")
        A("s_mov_b32 exec_hi, 0x000f000f")
        for e in range(8):
            A(f"ds_write_b128 v{ad}, {vr(vACC+4*e,4)} offset:{L_OP+16*e}")
        A("s_mov_b64 exec, -1")
        A(f"s_lshl_b32 s{sU0}, s{sG}, 16")
        A(f"s_add_u32 s{sU2}, s{sU0}, {WS_O1}")
        A(f"s_lshl_b32 s{sU0}, s{sJ}, 11")
        A(f"s_add_u32 s{sU0}, s{sU0}, s{sU2}")
        A(f"s_lshl_b32 s{sU1}, s{sU1}, 10")
        A(f"s_add_u32 s{sU0}, s{sU0}, s{sU1}")
        A("s_waitcnt lgkmcnt(0)")
        A("s_barrier")
        skip = self.lab("Lo")
        A("s_cmp_gt_u32 s3, 1")
        A(f"s_cbranch_scc1 {skip}")
        for wv in range(4):
            A(f"ds_read_b128 {vr(t+4*wv,4)}, v{rd} offset:{L_OP+2304*wv}")
        A("s_waitcnt lgkmcnt(2)")
        A(f"v_pk_add_f32 {vr(t,2)}, {vr(t,2)}, {vr(t+4,2)}")
        A(f"v_pk_add_f32 {vr(t+2,2)}, {vr(t+2,2)}, {vr(t+6,2)}")
        A("s_waitcnt lgkmcnt(0)")
        A(f"v_pk_add_f32 {vr(t+8,2)}, {vr(t+8,2)}, {vr(t+12,2)}")
        A(f"v_pk_add_f32 {vr(t+10,2)}, {vr(t+10,2)}, {vr(t+14,2)}")
        A(f"v_pk_add_f32 {vr(vBS,2)}, {vr(t,2)}, {vr(t+8,2)}")
        A(f"v_pk_add_f32 {vr(vBS+2,2)}, {vr(t+2,2)}, {vr(t+10,2)}")
        A(f"s_mov_b32 s{sWQO}, s{sU0}")
        if self.loc:
            glob = self.lab("Lg")
            A(f"s_cmp_eq_u32 s{sLOC}, 0")
            A(f"s_cbranch_scc1 {glob}")
            A(f"buffer_store_dwordx4 {vr(vBS,4)}, v{vV}, {srd(sWS)}, s{sU0} offen")
            A(f"s_branch {skip}")
            A(f"{glob}:")
        A(f"buffer_store_dwordx4 {vr(vBS,4)}, v{vV}, {srd(sWS)}, s{sU0} offen sc1")
        A(f"{skip}:")
        self.stamp("opub")
        if self.split:
            A(f"s_cmp_eq_u32 s{sS2}, 0")
            A("s_cbranch_scc1 L_s3")
            sv = (self.nload, self.done)
        pa = vE + 2
        A(f"v_lshrrev_b32 v{pa}, 4, v{vL}")
        A(f"v_lshlrev_b32 v{pa}, 11, v{pa}")
        A(f"v_and_b32 v{vT0}, 15, v{vL}")
        A(f"v_lshl_add_u32 v{pa}, v{vT0}, 4, v{pa}")
        A(f"s_lshr_b32 s{sU0}, s{sJ}, 4")
        A(f"s_lshl_b32 s{sU0}, s{sU0}, 10")
        A(f"s_add_u32 s{sU2}, s{sU2}, s{sU0}")
        A(f"s_lshl_b32 s{sU0}, s3, 8")
        A(f"s_add_u32 s{sU2}, s{sU2}, s{sU0}")
        for k in range(8):
            A(f"s_add_u32 s{10+k}, s{sU2}, {k*8192}")
        pb = vRING
        loads = [f"buffer_load_dwordx4 {vr(pb+4*k,4)}, v{pa}, {srd(sWS)}, s{10+k} offen sc1" for k in range(8)]
        pid = self.poll_issue(loads)[-1]
        if self.dyn == 1:
            self.role_poll_finish()
        if self.wl == 1:
            for k in range(4, 16):
                self.issue_weight(k)
        if self.split:
            A(f"v_bfe_u32 v{vE+3}, v{vL}, 3, 1")
            A(f"v_lshlrev_b32 v{vE+3}, 7, v{vE+3}")
            A(f"v_lshrrev_b32 v{vT0}, 4, v{vL}")
            A(f"v_lshl_add_u32 v{vE+3}, v{vT0}, 5, v{vE+3}")
            A(f"v_bfe_u32 v{vT0}, v{vL}, 2, 1")
            A(f"v_lshl_add_u32 v{vE+3}, v{vT0}, 4, v{vE+3}")
            A(f"v_add_u32 v{vE+3}, s{sU0}, v{vE+3}")
        self.wait(self.id_wo)
        w2 = vACC
        self.perm_pairs(w2, vZ + 4, vZ + 12)
        self.perm_pairs(w2 + 8, vZ + 20, vZ + 28)
        if self.split:
            self.perm_pairs(w2 + 16, vRING + 32, vRING + 36)
            self.perm_pairs(w2 + 24, vRING + 40, vRING + 44)
        self.poll_finish(loads, self.check_sentinel(pb), pid)
        self.stamp("hop1")
        for step in (4, 2, 1):
            for k in range(step):
                for h in (0, 2):
                    A(f"v_pk_add_f32 {vr(pb+4*k+h,2)}, {vr(pb+4*k+h,2)}, {vr(pb+4*(k+step)+h,2)}")
        self.tswap(32, [(pb, pb + 2), (pb + 1, pb + 3)])
        A(f"v_mov_b32 v{pb+2}, v{pb}")
        A(f"v_mov_b32 v{pb+3}, v{pb+1}")
        self.tswap(16, [(pb, pb + 2), (pb + 1, pb + 3)])
        A(f"v_cvt_pk_bf16_f32 v{pb}, v{pb}, v{pb+1}")
        A(f"v_mov_b32 v{pb+1}, v{pb}")
        A(f"v_permlane32_swap_b32 v{pb}, v{pb+1}")
        if self.split:
            acc = pb + 4
            for hf in range(2):
                for c in range(8):
                    A(f"v_dot2_f32_bf16 v{acc+8*hf+c}, v{w2+16*hf+c}, v{pb}, 0")
            for hf in range(2):
                for c in range(8):
                    A(f"v_dot2_f32_bf16 v{acc+8*hf+c}, v{w2+16*hf+8+c}, v{pb+1}, v{acc+8*hf+c}")
            r1 = acc + 16
            for c in range(8):
                self.dpp("v_add_f32", r1 + c, acc + c, acc + c, "row_ror:8", bank=0x3)
                self.dpp("v_add_f32", r1 + c, acc + c + 8, acc + c + 8, "row_ror:8", bank=0xc)
            r2 = r1 + 8
            for c in range(4):
                self.dpp("v_add_f32", r2 + c, r1 + c, r1 + c, "row_ror:12", bank=0x5)
                self.dpp("v_add_f32", r2 + c, r1 + c + 4, r1 + c + 4, "row_ror:4", bank=0xa)
            for q in ("quad_perm:[1,0,3,2]", "quad_perm:[2,3,0,1]"):
                for c in range(4):
                    self.dpp("v_add_f32", r2 + c, r2 + c, r2 + c, q)
            A("s_mov_b32 exec_lo, 0x11111111")
            A("s_mov_b32 exec_hi, 0x11111111")
            A(f"ds_write_b128 v{vE+3}, {vr(r2,4)} offset:{L_S2}")
        else:
            acc = pb + 4
            for c in range(8):
                A(f"v_dot2_f32_bf16 v{acc+c}, v{w2+c}, v{pb}, 0")
            for c in range(8):
                A(f"v_dot2_f32_bf16 v{acc+c}, v{w2+8+c}, v{pb+1}, v{acc+c}")
            r1 = acc + 8
            for c in range(4):
                self.dpp("v_add_f32", r1 + c, acc + c, acc + c, "row_ror:8", bank=0x3)
                self.dpp("v_add_f32", r1 + c, acc + c + 4, acc + c + 4, "row_ror:8", bank=0xc)
            r2 = r1 + 4
            for c in range(2):
                self.dpp("v_add_f32", r2 + c, r1 + c, r1 + c, "row_ror:12", bank=0x5)
                self.dpp("v_add_f32", r2 + c, r1 + c + 2, r1 + c + 2, "row_ror:4", bank=0xa)
            for q in ("quad_perm:[1,0,3,2]", "quad_perm:[2,3,0,1]"):
                for c in range(2):
                    self.dpp("v_add_f32", r2 + c, r2 + c, r2 + c, q)
            A(f"v_lshlrev_b32 v{vT0}, 1, v{vL}")
            A(f"s_lshl_b32 s{sU0}, s3, 7")
            A(f"v_add_u32 v{vT0}, s{sU0}, v{vT0}")
            A("s_mov_b32 exec_lo, 0x11111111")
            A("s_mov_b32 exec_hi, 0x11111111")
            A(f"ds_write_b64 v{vT0}, {vr(r2,2)} offset:{L_S2}")
        A("s_mov_b64 exec, -1")
        A("s_waitcnt lgkmcnt(0)")
        A("s_barrier")
        skip = self.lab("La")
        A("s_cmp_lg_u32 s3, 0")
        A(f"s_cbranch_scc1 {skip}")
        A(f"s_mov_b64 exec, {'0xffff' if self.split else '0xff'}")
        for wv in range(4):
            A(f"ds_read_b128 {vr(t+4*wv,4)}, v{vV} offset:{L_S2+(256 if self.split else 128)*wv}")
        A("s_waitcnt lgkmcnt(2)")
        A(f"v_pk_add_f32 {vr(t,2)}, {vr(t,2)}, {vr(t+4,2)}")
        A(f"v_pk_add_f32 {vr(t+2,2)}, {vr(t+2,2)}, {vr(t+6,2)}")
        A("s_waitcnt lgkmcnt(0)")
        A(f"v_pk_add_f32 {vr(t+8,2)}, {vr(t+8,2)}, {vr(t+12,2)}")
        A(f"v_pk_add_f32 {vr(t+10,2)}, {vr(t+10,2)}, {vr(t+14,2)}")
        A(f"v_pk_add_f32 {vr(t,2)}, {vr(t,2)}, {vr(t+8,2)}")
        A(f"v_pk_add_f32 {vr(t+2,2)}, {vr(t+2,2)}, {vr(t+10,2)}")
        A(f"buffer_store_dwordx4 {vr(t,4)}, v{vV}, {srd(sWS)}, s{sP} offen sc1")
        A("s_mov_b64 exec, -1")
        A(f"{skip}:")
        if self.cln == 1:
            skip = self.lab("Lc")
            A("s_cmp_gt_u32 s3, 1")
            A(f"s_cbranch_scc1 {skip}")
            A(f"buffer_store_dwordx4 {vr(vBS,4)}, v{vV}, {srd(sWS)}, s{sWQO} offen sc1")
            A(f"{skip}:")
        if self.cln == 2:
            skip = self.lab("Lc")
            A(f"s_and_b32 s{sU0}, s{sJ}, 15")
            A(f"s_lshl_b32 s{sU0}, s{sU0}, 2")
            A(f"s_add_u32 s{sU0}, s{sU0}, s3")
            A(f"s_cmp_lg_u32 s{sU0}, 3")
            A(f"s_cbranch_scc1 {skip}")
            A("buffer_wbl2 sc1")
            A(f"{skip}:")
        self.stamp("apub")
        if self.split:
            A("s_branch L_fin")
            A("L_s3:")
            self.nload, self.done = sv
        A("s_cmp_eq_u32 s5, 0")
        A(f"s_cbranch_scc1 {'L_cln' if self.cln == 3 else 'L_fin'}")
        vW = vRING + 80
        if self.sbar:
            A("s_barrier")
        if self.wl == 3:
            for k in range(4, 12 if self.dlate else 16):
                self.issue_weight(k)
        A(f"v_lshrrev_b32 v{pa}, 5, v{vL}")
        A(f"v_lshlrev_b32 v{pa}, 11, v{pa}")
        A(f"v_and_b32 v{vT0}, 31, v{vL}")
        A(f"v_lshl_add_u32 v{pa}, v{vT0}, 4, v{pa}")
        A(f"s_lshl_b32 s{sU0}, s3, 9")
        for k in range(8):
            A(f"s_add_u32 s{10+k}, s{sU0}, {WS_A2 + k*4096}")
        pid2 = self.poll_issue(loads)[-1]
        if self.dlate:
            for k in range(12, 16):
                self.issue_weight(k)
        for m in range(2 if self.dlate else 3):
            self.wait(self.id_w3[m + 1])
            if 'S' in self.dbg:
                self.stamp("w%d" % m)
            if self.wl in (1, 3):
                src = vRING + 32 + 16 * m
            else:
                src = vRD
                for i in range(16):
                    A(f"v_accvgpr_read_b32 v{vRD+i}, a{self.wa+16*m+i}")
            self.perm_pairs(vW + 16 * m, src, src + 4)
            self.perm_pairs(vW + 16 * m + 8, src + 8, src + 12)
        x0, x1, hadr, radr, gadr = vE + 4, vE + 5, vE + 6, vE + 7, vE + 3
        A(f"v_lshlrev_b32 v{x0}, 16, v{vX3}")
        A(f"v_and_b32 v{x1}, 0xffff0000, v{vX3}")
        A(f"v_lshlrev_b32 v{hadr}, 3, v{vT0}")
        A(f"v_lshrrev_b32 v{vT0}, 5, v{vL}")
        A(f"v_lshl_add_u32 v{hadr}, v{vT0}, 2, v{hadr}")
        A(f"s_lshl_b32 s{sU0}, s3, 8")
        A(f"v_add_u32 v{hadr}, s{sU0}, v{hadr}")
        A(f"v_lshrrev_b32 v{radr}, 1, v{vL}")
        A(f"v_lshlrev_b32 v{radr}, 3, v{radr}")
        A(f"v_add_u32 v{radr}, s{sU0}, v{radr}")
        A(f"v_lshrrev_b32 v{gadr}, 5, v{vL}")
        A(f"v_lshlrev_b32 v{gadr}, 8, v{gadr}")
        A(f"v_and_b32 v{vT0}, 1, v{vL}")
        A(f"v_lshl_add_u32 v{gadr}, v{vT0}, 7, v{gadr}")
        A(f"v_bfe_u32 v{vT0}, v{vL}, 4, 1")
        A(f"v_lshl_add_u32 v{gadr}, v{vT0}, 6, v{gadr}")
        A(f"s_lshl_b32 s{sU0}, s3, 2")
        A(f"v_add_u32 v{gadr}, s{sU0}, v{gadr}")
        self.poll_finish(loads, self.check_sentinel(pb), pid2 if self.dlate else None)
        self.stamp("hop2")
        if self.cln == 3 or (self.split and self.cln == 1 and not self.clnp):
            skip = self.lab("Lc")
            A("s_cmp_gt_u32 s3, 1")
            A(f"s_cbranch_scc1 {skip}")
            A(f"buffer_store_dwordx4 {vr(vBS,4)}, v{vV}, {srd(sWS)}, s{sWQO} offen sc1")
            A(f"{skip}:")
        for step in (4, 2, 1):
            for k in range(step):
                for h in (0, 2):
                    A(f"v_pk_add_f32 {vr(pb+4*k+h,2)}, {vr(pb+4*k+h,2)}, {vr(pb+4*(k+step)+h,2)}")
        self.tswap(32, [(pb, pb + 2), (pb + 1, pb + 3)])
        h0, h1, s1, s2, hp = pb, pb + 1, pb + 4, pb + 5, pb + 6
        self.rnd(h0, h0)
        self.rnd(h1, h1)
        A(f"v_add_f32 v{h0}, v{h0}, v{x0}")
        A(f"v_add_f32 v{h1}, v{h1}, v{x1}")
        A(f"v_cvt_pk_bf16_f32 v{hp}, v{h0}, v{h1}")
        A(f"v_lshlrev_b32 v{h0}, 16, v{hp}")
        A(f"v_and_b32 v{h1}, 0xffff0000, v{hp}")
        A(f"ds_write_b32 v{hadr}, v{hp} offset:{L_H}")
        A(f"v_add_f32 v{s1}, v{h0}, v{h1}")
        A(f"v_mul_f32 v{s2}, v{h0}, v{h0}")
        A(f"v_fmac_f32 v{s2}, v{h1}, v{h1}")
        for c in ("row_ror:8", "row_ror:4", "row_ror:2", "row_ror:1"):
            for r in (s1, s2):
                self.dpp("v_add_f32", r, r, r, c)
        for r in (s1, s2):
            self.dpp("v_add_f32", r, r, r, "row_bcast:15", row=0xa)
        for r in (s1, s2):
            self.dpp("v_add_f32", r, r, r, "row_bcast:31", row=0xc)
        A(f"s_lshl_b32 s{sU0}, s3, 3")
        A(f"v_mov_b32 v{vT0}, s{sU0}")
        A(f"v_mov_b32 v{pb+7}, 0")
        A("s_mov_b32 exec_lo, 0")
        A("s_mov_b32 exec_hi, 0x80000000")
        A(f"ds_write_b64 v{vT0}, {vr(s1,2)} offset:{L_LNS}")
        A("s_mov_b64 exec, -1")
        A("s_waitcnt lgkmcnt(0)")
        A("s_barrier")
        q = pb + 8
        A(f"ds_read_b128 {vr(q,4)}, v{pb+7} offset:{L_LNS}")
        A(f"ds_read_b128 {vr(q+4,4)}, v{pb+7} offset:{L_LNS+16}")
        A("s_waitcnt lgkmcnt(0)")
        A(f"v_pk_add_f32 {vr(q,2)}, {vr(q,2)}, {vr(q+2,2)}")
        A(f"v_pk_add_f32 {vr(q+4,2)}, {vr(q+4,2)}, {vr(q+6,2)}")
        A(f"v_pk_add_f32 {vr(q,2)}, {vr(q,2)}, {vr(q+4,2)}")
        mean, var, mb, rs = q, q + 1, q + 2, q + 3
        A(f"v_mul_f32 v{mean}, 0x3b000000, v{mean}")
        A(f"v_mul_f32 v{var}, 0x3b000000, v{var}")
        A(f"v_fma_f32 v{var}, -v{mean}, v{mean}, v{var}")
        self.ln_scalars(mean, var, mb, rs)
        self.norm_pair(hp, h0, h1, mb, rs)
        A(f"ds_write_b32 v{hadr}, v{hp} offset:{L_HN}")
        A(f"ds_read_b64 {vr(q+4,2)}, v{radr} offset:{L_HN}")
        A("s_waitcnt lgkmcnt(0)")
        hn = q + 4
        acc = pb + 16
        for m in range(2):
            for c in range(8):
                A(f"v_dot2_f32_bf16 v{acc+8*m+c}, v{vW+16*m+c}, v{hn}, 0")
        for m in range(2):
            for c in range(8):
                A(f"v_dot2_f32_bf16 v{acc+8*m+c}, v{vW+16*m+8+c}, v{hn+1}, v{acc+8*m+c}")
        self.tswap(32, [(acc + c, acc + 8 + c) for c in range(8)])
        self.tswap(16, [(acc + c, acc + 4 + c) for c in range(4)])
        for c in ("row_ror:4", "row_ror:8", "quad_perm:[2,3,0,1]"):
            for r in range(4):
                self.dpp("v_add_f32", acc + r, acc + r, acc + r, c)
        A("s_mov_b32 exec_lo, 0x00030003")
        A("s_mov_b32 exec_hi, 0x00030003")
        for r in range(4):
            A(f"ds_write_b32 v{gadr}, v{acc+r} offset:{L_GU+16*r}")
        A("s_mov_b64 exec, -1")
        A(f"v_and_b32 v{vT0}, 0xf0, v{vV}")
        if self.dn2:
            A(f"v_lshrrev_b32 v{gadr}, 4, v{vL}")
            A(f"v_lshlrev_b32 v{gadr}, 7, v{gadr}")
            A(f"v_and_b32 v{x0}, 3, v{vL}")
            A(f"v_lshl_add_u32 v{gadr}, v{x0}, 5, v{gadr}")
            A(f"v_bfe_u32 v{x0}, v{vL}, 2, 2")
            A(f"v_lshl_add_u32 v{gadr}, v{x0}, 3, v{gadr}")
        else:
            A(f"v_lshrrev_b32 v{radr}, 4, v{vL}")
            A(f"v_lshlrev_b32 v{radr}, 3, v{radr}")
            A(f"s_lshl_b32 s{sU0}, s3, 5")
            A(f"v_add_u32 v{radr}, s{sU0}, v{radr}")
            A(f"v_lshlrev_b32 v{hadr}, 1, v{vL}")
            A(f"v_add_u32 v{hadr}, s{sU0}, v{hadr}")
            A(f"v_lshlrev_b32 v{gadr}, 1, v{vT0}")
            A(f"v_lshrrev_b32 v{x0}, 5, v{vL}")
            A(f"v_lshl_add_u32 v{gadr}, v{x0}, 4, v{gadr}")
            A(f"v_bfe_u32 v{x0}, v{vL}, 4, 1")
            A(f"v_lshl_add_u32 v{gadr}, v{x0}, 3, v{gadr}")
        A(f"s_lshl_b32 s{sU1}, s4, 11")
        A(f"s_lshl_b32 s{sU0}, s3, 9")
        A(f"s_add_u32 s{sU1}, s{sU1}, s{sU0}")
        A(f"s_add_u32 s{sU1}, s{sU1}, {WS_A3}")
        A("s_waitcnt lgkmcnt(0)")
        A("s_barrier")
        A(f"ds_read_b128 {vr(q,4)}, v{vT0} offset:{L_GU}")
        A(f"ds_read_b128 {vr(q+4,4)}, v{vT0} offset:{L_GU+256}")
        if self.dlate:
            assert self.wl == 3
            A("s_waitcnt vmcnt(0)")
            self.perm_pairs(vW + 32, vRING + 64, vRING + 68)
            self.perm_pairs(vW + 40, vRING + 72, vRING + 76)
        A("s_waitcnt lgkmcnt(0)")
        A(f"v_pk_add_f32 {vr(q,2)}, {vr(q,2)}, {vr(q+2,2)}")
        A(f"v_pk_add_f32 {vr(q+4,2)}, {vr(q+4,2)}, {vr(q+6,2)}")
        A(f"v_add_f32 v{q}, v{q}, v{q+1}")
        A(f"v_add_f32 v{q+4}, v{q+4}, v{q+5}")
        self.rnd(q, q)
        self.rnd(q + 4, q + 4)
        A(f"v_max_f32 v{q}, 0, v{q}")
        A(f"v_mul_f32 v{q}, v{q}, v{q+4}")
        if self.dn2:
            A(f"v_cvt_pk_bf16_f32 v{q+1}, v{q}, 0")
            A(f"v_cvt_pk_bf16_f32 v{q}, 0, v{q}")
            A(f"v_mov_b32_dpp v{q+4}, v{q+1} quad_perm:[0,0,0,0] row_mask:0xf bank_mask:0xf")
            A(f"v_mov_b32_dpp v{q+5}, v{q+1} quad_perm:[2,2,2,2] row_mask:0xf bank_mask:0xf")
            self.dpp("v_or_b32", q + 4, q, q + 4, "quad_perm:[1,1,1,1]")
            self.dpp("v_or_b32", q + 5, q, q + 5, "quad_perm:[3,3,3,3]")
            for c in range(8):
                A(f"v_dot2_f32_bf16 v{acc+c}, v{vW+32+c}, v{q+4}, 0")
            for c in range(8):
                A(f"v_dot2_f32_bf16 v{acc+c}, v{vW+40+c}, v{q+5}, v{acc+c}")
            r1 = acc + 8
            for c in range(4):
                self.dpp("v_add_f32", r1 + c, acc + c, acc + c, "row_ror:8", bank=0x3)
                self.dpp("v_add_f32", r1 + c, acc + c + 4, acc + c + 4, "row_ror:8", bank=0xc)
            r2 = r1 + 4
            for c in range(2):
                self.dpp("v_add_f32", r2 + c, r1 + c, r1 + c, "row_ror:12", bank=0x5)
                self.dpp("v_add_f32", r2 + c, r1 + c + 2, r1 + c + 2, "row_ror:4", bank=0xa)
            A(f"buffer_store_dwordx2 {vr(r2,2)}, v{gadr}, {srd(sWS)}, s{sU1} offen sc1")
        else:
            A(f"v_cvt_pk_bf16_f32 v{q}, v{q}, v{q}")
            A("s_mov_b64 exec, 0xffff")
            A(f"ds_write_b16 v{hadr}, v{q} offset:{L_F}")
            A("s_mov_b64 exec, -1")
            A(f"ds_read_b64 {vr(q+4,2)}, v{radr} offset:{L_F}")
            A("s_waitcnt lgkmcnt(0)")
            for c in range(8):
                A(f"v_dot2_f32_bf16 v{acc+c}, v{vW+32+c}, v{q+4}, 0")
            for c in range(8):
                A(f"v_dot2_f32_bf16 v{acc+c}, v{vW+40+c}, v{q+5}, v{acc+c}")
            self.tswap(32, [(acc + c, acc + 4 + c) for c in range(4)])
            self.tswap(16, [(acc + c, acc + 2 + c) for c in range(2)])
            A(f"buffer_store_dwordx2 {vr(acc,2)}, v{gadr}, {srd(sWS)}, s{sU1} offen sc1")
        self.stamp("dpub")
        A("s_lshl_b32 s9, s3, 8")
        A("s_add_u32 s9, s9, s4")
        A("s_cmp_ge_u32 s9, 32")
        A(f"s_cbranch_scc1 {'L_cln' if self.clnp else 'L_fin'}")
        A(f"v_lshrrev_b32 v{pa}, 2, v{vL}")
        A(f"v_lshlrev_b32 v{pa}, 11, v{pa}")
        A(f"v_and_b32 v{vT0}, 3, v{vL}")
        A(f"v_lshl_add_u32 v{pa}, v{vT0}, 4, v{pa}")
        A(f"s_lshl_b32 s{sU0}, s4, 6")
        for k in range(7):
            A(f"s_add_u32 s{10+k}, s{sU0}, {WS_A3 + k*32768}")
        self.poll_issue(loads[:7])
        A(f"v_lshlrev_b32 v{x0}, 3, v{vT0}")
        A(f"v_lshrrev_b32 v{x1}, 5, v{vL}")
        A(f"v_lshl_add_u32 v{x0}, v{x1}, 2, v{x0}")
        A(f"v_bfe_u32 v{x1}, v{vL}, 4, 1")
        A(f"v_lshl_add_u32 v{x0}, v{x1}, 1, v{x0}")
        A(f"s_lshl_b32 s{sU0}, s4, 5")
        A(f"v_add_u32 v{x0}, s{sU0}, v{x0}")
        A(f"ds_read_u16 v{x1}, v{x0} offset:{L_H}")
        A(f"v_mov_b32 v{hadr}, s{sE}")
        A("s_waitcnt lgkmcnt(0)")
        A(f"v_lshlrev_b32 v{x1}, 16, v{x1}")
        self.poll_finish(loads[:7], self.check_sentinel(pb))
        self.stamp("hop3")
        for (a_, b_) in ((0, 4), (1, 5), (2, 6), (0, 2), (1, 3), (0, 1)):
            for h in (0, 2):
                A(f"v_pk_add_f32 {vr(pb+4*a_+h,2)}, {vr(pb+4*a_+h,2)}, {vr(pb+4*b_+h,2)}")
        self.tswap(32, [(pb, pb + 2), (pb + 1, pb + 3)])
        self.tswap(16, [(pb, pb + 1)])
        self.dpp("v_add_f32", pb, pb, pb, "row_ror:4")
        self.dpp("v_add_f32", pb, pb, pb, "row_ror:8")
        self.rnd(pb, pb)
        A(f"v_add_f32 v{pb}, v{pb}, v{x1}")
        A(f"v_cvt_pk_bf16_f32 v{pb}, v{pb}, v{pb}")
        A("s_mov_b32 exec_lo, 0x000f000f")
        A("s_mov_b32 exec_hi, 0x000f000f")
        A(f"buffer_store_short v{pb}, v{x0}, {srd(sOUT)}, 0 offen{self.osc}")
        if self.clnp:
            A("s_mov_b64 exec, -1")
            A(f"buffer_store_dwordx4 {vr(vBS,4)}, v{vV}, {srd(sWS)}, s{sWQO} offen sc1")
        A("s_cmp_lg_u32 s4, 0")
        A("s_cbranch_scc1 L_fin")
        A("s_mov_b64 exec, 1")
        A(f"buffer_store_dword v{hadr}, v{vV}, {srd(sWS)}, 0 offen sc1")
        if self.amp:
            self.stamp("fin")
            A(f"v_readlane_b32 s98, v{vST}, 0")
            A(f"v_readlane_b32 s99, v{vST}, 1")
            A("s_sub_u32 s98, s99, s98")
            A(f"s_sub_i32 s98, s98, {self.amp[1]}")
            A("s_max_i32 s98, s98, 0")
            A("s_min_i32 s98, s98, 3000")
            A("s_mul_i32 s98, s98, 10")
            self.delay("s98")
        if self.cln == 3 or self.clnp:
            A("s_branch L_fin")
            A("L_cln:")
            A("s_cmp_gt_u32 s3, 1")
            A("s_cbranch_scc1 L_fin")
            if self.cslp:
                A(f"s_sleep {self.cslp}")
            A(f"buffer_store_dwordx4 {vr(vBS,4)}, v{vV}, {srd(sWS)}, s{sWQO} offen sc1")
        A("L_fin:")
        A("s_mov_b64 exec, -1")
        if self.stamps:
            self.stamp("end")
            A(f"s_getreg_b32 s{sU0}, hwreg(HW_REG_XCC_ID)")
            A(f"v_writelane_b32 v{vST}, s{sU0}, 63")
            A(f"s_lshl_b32 s{sU0}, s2, 10")
            A(f"s_lshl_b32 s{sU1}, s3, 8")
            A(f"s_add_u32 s{sU0}, s{sU0}, s{sU1}")
            A(f"s_add_u32 s{sU0}, s{sU0}, {WS_STAMP}")
            A(f"v_lshlrev_b32 v{vT0}, 2, v{vL}")
            A(f"buffer_store_dword v{vST}, v{vT0}, {srd(sWS)}, s{sU0} offen")
        if 'E' in self.dbg:
            A("s_endpgm")
        A("L_end:")
        if 'E' in self.dbg:
            self.delay(10000)
        A("s_endpgm")

    def delay(self, ticks, skipreg=None):
        A = self.A
        lp, dn = self.lab("Ld"), self.lab("Le")
        if skipreg:
            A(f"s_cmp_lg_u32 {skipreg}, 0")
            A(f"s_cbranch_scc1 {dn}")
        A("s_memrealtime s[100:101]")
        A("s_waitcnt lgkmcnt(0)")
        A(f"{lp}:")
        A("s_memrealtime vcc")
        A("s_waitcnt lgkmcnt(0)")
        A("s_sub_u32 vcc_lo, vcc_lo, s100")
        A(f"s_cmp_lt_u32 vcc_lo, {ticks}")
        A(f"s_cbranch_scc1 {lp}")
        A(f"{dn}:")

    def pace_wait(self, n):
        if not self.pace or n < self.pace_from or n > self.pace_to:
            return
        A = self.A
        lim = int(round(self.pace0 + n * self.pace))
        lp, go = self.lab("Lw"), self.lab("Lw")
        A(f"{lp}:")
        A("s_memrealtime vcc")
        A("s_waitcnt lgkmcnt(0)")
        A(f"s_sub_u32 vcc_lo, vcc_lo, s{sT0}")
        A(f"s_cmp_ge_u32 vcc_lo, {lim}")
        A(f"s_cbranch_scc1 {go}")
        A("s_sleep 2")
        A(f"s_branch {lp}")
        A(f"{go}:")

    def body(self):
        R, G = self.R, 8
        N = 256
        self.prologue()
        self.stamp("start")
        ids = {}
        st = dict(cons=0, q=False, s=False, w=False)
        hooks = {}
        for at, fn in ((self.W0, self.prologue2), (self.qat, self.qphase), (self.pq, self.qpoll_issue),
                       (128 + self.ps, self.spoll_issue), (self.prep_at, self.weights_prep_addr), (self.fl_at, self.flags_issue)):
            hooks.setdefault(at, []).append(fn)
        if self.dyn == 1:
            hooks.setdefault(256, []).append(self.role_poll_issue)
        if self.wl == 4:
            assert self.R <= 84 and not self.dyn
            for k, at in enumerate(self.wpos):
                assert at >= self.prep_at
                hooks.setdefault(at, []).append(lambda k=k: self.issue_weight(k + 4))
        for i in range(4):
            if self.wqs[i]:
                hooks.setdefault(self.wqs[i], []).insert(0, (lambda i=i: self.issue_wq(i)))

        def consume_one():
            cons = st["cons"]
            if not st["q"]:
                self.qpoll_finish()
                st["q"] = True
            if cons >= 128 and not st["s"]:
                self.spoll_finish()
                st["s"] = True
            if cons == self.fl_chk:
                self.flags_finish()
                if self.dyn == 1:
                    self.role_ticket()
            if self.dyn == 1 and cons == self.rl_pub:
                self.role_publish()
            if self.wl and cons == self.wo_at:
                for k in range(4):
                    self.issue_weight(k)
            if self.wl == 2 and self.wat2 and cons == self.wat2:
                assert self.role_known and not st["w"]
                for k in range(4, 16):
                    self.issue_weight(k)
                st["w"] = True
            n = cons + G
            self.wait(ids[n - 1])
            if cons < 128:
                for i in range(cons, n):
                    self.consume_k(i)
            else:
                self.consume_v_group((cons - 128) // 8)
            st["cons"] = n
            if n == 128:
                self.stats_publish()

        def window(issued):
            if issued < self.W0:
                return 1 << 20
            return self.W if issued < self.Wat else self.W2

        issued = 0
        while issued < N:
            while issued + G - R > st["cons"]:
                consume_one()
            for i0 in range(issued, issued + G, self.ig):
                w = window(i0)
                if self.ctl and i0 >= self.ctl["frm"]:
                    c = self.ctl
                    tau = c["a"] + c["b"] * i0 / 8
                    go = self.lab("Lk")
                    self.A("s_memrealtime vcc")
                    for lv, w in enumerate(c["W"]):
                        tid = ids[i0 - (w - self.ig) - 1]
                        if lv == 0:
                            self.wait(tid)
                            self.A("s_waitcnt lgkmcnt(0)")
                            self.A(f"s_sub_u32 s{sT}, vcc_lo, s{sT0}")
                        else:
                            self.A(f"s_cmp_gt_u32 s{sT}, {int(round(tau + c['th'][lv-1]))}")
                            self.A(f"s_cbranch_scc1 {go}")
                            if tid > self.done:
                                self.A(f"s_waitcnt vmcnt({self.nload - tid})")
                    self.A(f"{go}:")
                elif i0 - (w - self.ig) > 0:
                    self.wait(ids[i0 - (w - self.ig) - 1])
                self.pace_wait(i0 / G)
                if i0 in self.bars:
                    self.A("s_barrier")
                for i in range(i0, i0 + self.ig):
                    ids[i] = self.issue_stream(i)
            issued += G
            for h in hooks.get(issued, []):
                h()
            if not self.wl and not st["w"] and st["s"] and st["cons"] >= 176 and issued >= self.wat:
                for k in range(16):
                    self.issue_weight(k)
                st["w"] = True
            if issued == 256 and 256 in self.bars:
                self.A("s_barrier")
            if self.wl == 2 and not self.wat2 and not st["w"] and self.role_known and st["cons"] >= 176 and issued >= self.wat:
                for k in range(4, 16):
                    self.issue_weight(k)
                st["w"] = True
            k = 0
            while k < self.slope and st["cons"] + G <= issued and ids[st["cons"] + G - 1] <= self.done:
                if not st["q"] and issued < self.holdq:
                    break
                if st["cons"] == 128 and not st["s"] and issued < min(128 + self.holds, N):
                    break
                consume_one()
                k += 1
        while st["cons"] < N:
            consume_one()
            if not self.wl and not st["w"] and st["cons"] >= 176:
                for k in range(16):
                    self.issue_weight(k)
                st["w"] = True
        assert self.wl != 2 or st["w"]
        if self.wl and self.wo_at >= 256:
            for k in range(4):
                self.issue_weight(k)
        self.tail()

    def text(self):
        self.body()
        lines, nn = asmlib.pad(self.L)
        hdr = [
            "; Fused pre-LN GQA decode block + ReGLU MLP, one persistent launch (generated by work/gen.py).",
            f"; @launch grid=(256,1,1) block=(256,1,1) lds={LDS_BYTES}",
            '.amdgcn_target "amdgcn-amd-amdhsa--gfx950"', ".text", f".globl {NAME}", ".p2align 8",
            f".type {NAME},@function", f"{NAME}:"]
        ftr = ['.section .rodata,"a"', ".p2align 6", f".amdhsa_kernel {NAME}",
               "  .amdhsa_next_free_vgpr 512", "  .amdhsa_next_free_sgpr 102", "  .amdhsa_accum_offset 256",
               "  .amdhsa_group_segment_fixed_size 0", "  .amdhsa_kernarg_size 96", "  .amdhsa_user_sgpr_count 2",
               "  .amdhsa_user_sgpr_kernarg_segment_ptr 1", "  .amdhsa_system_sgpr_workgroup_id_x 1", ".end_amdhsa_kernel"]
        if self.stamps:
            hdr.insert(1, "; stamps: " + " ".join(self.stamp_names))
        return "\n".join(hdr + lines + ftr) + "\n"


if __name__ == "__main__":
    out = sys.argv[1]
    kw = eval("dict(" + (sys.argv[2] if len(sys.argv) > 2 else "") + ")")
    open(out, "w").write(Gen(**kw).text())
```
